```python
import torch

def _softmax(x, axis=-1):
    return torch.softmax(x, dim=axis)
def _gelu(x):
    return torch.nn.functional.gelu(x, approximate="tanh")
def _silu(x):
    return torch.nn.functional.silu(x)
def _sigmoid(x):
    return torch.sigmoid(x)
def _layernorm(x, axis=-1, eps=1e-5):
    m = x.mean(dim=axis, keepdim=True)
    v = x.var(dim=axis, keepdim=True, unbiased=False)
    return (x - m) / torch.sqrt(v + eps)
def _scatter_add(tgt, idx, src, axis=0):
    return tgt.clone().index_add_(axis, idx, src)
def _segment_sum(src, seg, n):
    out = torch.zeros((n,) + src.shape[1:], dtype=src.dtype)
    return out.index_add_(0, seg, src)
def _pad(x, pw):
    flat = tuple(v for pair in reversed(pw) for v in pair)
    return torch.nn.functional.pad(x, flat)

kernel_name = 'concat_heads__sliding_block_cached__gqa_block_cached__decode'

def setup_inputs():

    _w = (lambda a: (lambda t: t.to(torch.bfloat16) if t.is_floating_point() else t)(torch.as_tensor(a)))
    def _A_setup():
        B, Sq, D = 1, 1, 576
        Hq, Hkv, Sk, Dh = 32, 16, 32768, 128
        assert Hq % Hkv == 0, (Hq, Hkv)
        return {
            "x": _w((lambda *s: torch.randn(*s, dtype=torch.bfloat16) * 0.8)(B, Sq, D)),
            "k_cache": _w((lambda *s: torch.randn(*s, dtype=torch.bfloat16) * 1.6)(B, Hkv, Sk, Dh)),
            "v_cache": _w((lambda *s: torch.randn(*s, dtype=torch.bfloat16) * 0.2)(B, Hkv, Sk, Dh)),
            "wq": _w((lambda *s: torch.randn(*s, dtype=torch.bfloat16) * 1.6)(D, Hq * Dh) * (D ** -0.5)),
            "wo": _w((lambda *s: torch.randn(*s, dtype=torch.bfloat16) * 0.2)(Hq * Dh, D) * ((Hq * Dh) ** -0.5)),
        }
    _A_in = _A_setup()

    def _B_setup():
        B, Sq, D = 1, 1, 576
        Hq, Hkv, Sk, Dh = 32, 16, 32768, 128
        assert Hq % Hkv == 0, (Hq, Hkv)
        return {
            "x": _w((lambda *s: torch.randn(*s, dtype=torch.bfloat16) * 0.8)(B, Sq, D)),
            "k_cache": _w((lambda *s: torch.randn(*s, dtype=torch.bfloat16) * 1.6)(B, Hkv, Sk, Dh)),
            "v_cache": _w((lambda *s: torch.randn(*s, dtype=torch.bfloat16) * 0.2)(B, Hkv, Sk, Dh)),
            "wq": _w((lambda *s: torch.randn(*s, dtype=torch.bfloat16) * 1.6)(D, Hq * Dh) * (D ** -0.5)),
            "wo": _w((lambda *s: torch.randn(*s, dtype=torch.bfloat16) * 0.2)(Hq * Dh, D) * ((Hq * Dh) ** -0.5)),
        }
    _B_in = _B_setup()

    return {
        "A_x": _A_in["x"],
        "A_k_cache": _A_in["k_cache"],
        "A_v_cache": _A_in["v_cache"],
        "A_wq": _A_in["wq"],
        "A_wo": _A_in["wo"],
        "B_x": _B_in["x"],
        "B_k_cache": _B_in["k_cache"],
        "B_v_cache": _B_in["v_cache"],
        "B_wq": _B_in["wq"],
        "B_wo": _B_in["wo"],
    }

def reference(A_x, A_k_cache, A_v_cache, A_wq, A_wo, B_x, B_k_cache, B_v_cache, B_wq, B_wo):
    def _A_ref(x, k_cache, v_cache, wq, wo):
        B, Sq, D = x.shape
        Hq, Dh = 32, 128
        Hkv, Sk = k_cache.shape[1], k_cache.shape[2]
        W = min(4096, max(256, Sk // 4))
        rep = Hq // Hkv
        q = (lambda x, *d: x.permute(*d))((x @ wq).reshape(B, Sq, Hq, Dh), 0, 2, 1, 3)
        k = (lambda x, n, axis: torch.repeat_interleave(x, n, dim=axis))(k_cache[:, :, Sk - W:, :], rep, axis=1)
        v = (lambda x, n, axis: torch.repeat_interleave(x, n, dim=axis))(v_cache[:, :, Sk - W:, :], rep, axis=1)
        scores = torch.einsum("bhqd,bhkd->bhqk", q, k) * (Dh ** -0.5)
        p = _softmax(scores, axis=-1)
        o = torch.einsum("bhqk,bhkd->bhqd", p, v)
        return (lambda x, *d: x.permute(*d))(o, 0, 2, 1, 3).reshape(B, Sq, Hq * Dh) @ wo

    def _B_ref(x, k_cache, v_cache, wq, wo):
        B, Sq, D = x.shape
        Hq, Dh = 32, 128
        Hkv = k_cache.shape[1]
        rep = Hq // Hkv
        q = (lambda x, *d: x.permute(*d))((x @ wq).reshape(B, Sq, Hq, Dh), 0, 2, 1, 3)
        k = (lambda x, n, axis: torch.repeat_interleave(x, n, dim=axis))(k_cache, rep, axis=1)
        v = (lambda x, n, axis: torch.repeat_interleave(x, n, dim=axis))(v_cache, rep, axis=1)
        scores = torch.einsum("bhqd,bhkd->bhqk", q, k) * (Dh ** -0.5)
        p = _softmax(scores, axis=-1)
        o = torch.einsum("bhqk,bhkd->bhqd", p, v)
        return (lambda x, *d: x.permute(*d))(o, 0, 2, 1, 3).reshape(B, Sq, Hq * Dh) @ wo

    a = _A_ref(A_x, A_k_cache, A_v_cache, A_wq, A_wo)
    b = _B_ref(B_x, B_k_cache, B_v_cache, B_wq, B_wo)
    return torch.concatenate([a, b], axis=-1)
```

```python
import re
def regs(tok):
    tok = tok.strip()
    neg = tok.lstrip("-")
    if neg.startswith("abs("): neg = neg[4:-1]
    m = re.fullmatch(r"([vsa])(\d+)", neg)
    if m: return {(m.group(1), int(m.group(2)))}
    m = re.fullmatch(r"([vsa])\[(\d+):(\d+)\]", neg)
    if m: return {(m.group(1), i) for i in range(int(m.group(2)), int(m.group(3)) + 1)}
    if neg in ("vcc", "exec", "m0"): return {(neg, 0)}
    if neg in ("vcc_lo", "vcc_hi"): return {("vcc", 0)}
    if neg in ("exec_lo", "exec_hi"): return {("exec", 0)}
    return set()
TRANS = ("v_exp_f32", "v_log_f32", "v_rcp_f32", "v_rsq_f32", "v_sqrt_f32", "v_sin_f32", "v_cos_f32")
def parse(line):
    line = line.split(";")[0].strip()
    if not line or line.endswith(":") or line.startswith("."): return None
    p = line.split(None, 1)
    op = p[0]; rest = p[1] if len(p) > 1 else ""
    toks = [t.strip() for t in rest.split(",")]
    if toks:
        last = toks[-1].split()
        mods = " ".join(last[1:]) if last else ""
        toks[-1] = last[0] if last else ""
    else: mods = ""
    d = dict(op=op, toks=toks, mods=mods, line=line, w=set(), r=set())
    R = [regs(t) for t in toks]
    d["valu"] = op.startswith("v_") and not op.startswith("v_mfma")
    d["mfma"] = op.startswith("v_mfma")
    d["vmem"] = op.startswith(("buffer_", "global_", "flat_"))
    d["ds"] = op.startswith("ds_")
    d["salu"] = op.startswith("s_")
    d["dpp"] = "_dpp" in op or "row_" in mods or "quad_perm" in mods
    if d["mfma"]:
        d["w"] = R[0]; d["ab"] = R[1] | R[2]; d["c"] = R[3]; d["r"] = d["ab"] | d["c"]
    elif d["valu"]:
        if op.startswith("v_permlane") and "swap" in op:
            d["w"] = R[0] | R[1]; d["r"] = R[0] | R[1]
        elif op.startswith("v_cmp"):
            d["w"] = R[0]; d["r"] = set().union(*R[1:])
            if op.startswith("v_cmpx"): d["w"] = d["w"] | {("exec", 0)}
        elif "_co_" in op:
            d["w"] = R[0] | R[1]; d["r"] = set().union(*R[2:])
        else:
            d["w"] = R[0]; d["r"] = set().union(*R[1:]) if len(R) > 1 else set()
            if op.startswith(("v_fmac", "v_dot2c")) or d["dpp"]: d["r"] |= R[0]
    elif d["vmem"]:
        if "load" in op and "lds" not in mods.split() and "load_lds" not in op:
            d["w"] = R[0]; d["r"] = set().union(*R[1:])
        elif "atomic" in op and "sc0" in mods.split() and op.startswith("global"):
            d["w"] = R[0]; d["r"] = set().union(*R[1:])
        else:
            d["r"] = set().union(*R) if R else set()
            if "lds" in mods.split() or "load_lds" in op: d["r"] |= {("m0", 0)}; d["ldsdma"] = True
        if "store" in op and ("x4" in op or "x3" in op):
            d["wide"] = R[0] if op.startswith("buffer") else R[1]
    elif d["ds"]:
        if "read" in op or "rtn" in op or "permute" in op or "swizzle" in op:
            d["w"] = R[0]; d["r"] = set().union(*R[1:])
        else: d["r"] = set().union(*R)
    elif d["salu"]:
        if op.startswith(("s_cmp", "s_waitcnt", "s_nop", "s_cbranch", "s_branch", "s_barrier", "s_sleep", "s_endpgm", "s_setprio", "s_setpc", "s_bitcmp")):
            d["r"] = set().union(*R) if R else set()
        else:
            d["w"] = R[0]; d["r"] = set().union(*R[1:]) if len(R) > 1 else set()
            if "saveexec" in op: d["w"] |= {("exec", 0)}
    return d
def states(d):
    if d["op"] == "s_nop": return int(d["toks"][0], 0) + 1
    return 1
def passes(op):
    if "16x16x32" in op or "16x16x16" in op: return 4
    if "32x32x16" in op or "32x32x8" in op: return 8
    raise ValueError(op)
def need(p, c):
    n = 0; why = ""
    def up(k, w):
        nonlocal n, why
        if k > n: n, why = k, w
    V = lambda s: {x for x in s if x[0] in "va"}
    S = lambda s: {x for x in s if x[0] in ("s", "vcc")}
    if p["valu"]:
        pw = p["w"]
        if c["mfma"] and V(pw) & c["r"]: up(2, "valu->mfma")
        if c["valu"] and c["dpp"] and V(pw) & c["r"]: up(2, "valu->dpp")
        if c["valu"] and c["op"].startswith("v_permlane") and V(pw) & c["r"]: up(2, "valu->permlane")
        if c["op"].startswith(("v_readlane", "v_readfirstlane")) and V(pw) & c["r"]: up(1, "valu->readlane")
        if S(pw) & c["r"]:
            if c["vmem"]: up(5, "valu sgpr->vmem")
            elif c["op"].startswith(("v_readlane", "v_writelane")): up(4, "valu sgpr->lane sel")
            elif c["valu"]: up(2, "valu sgpr->valu")
        if p["op"].startswith(TRANS) and c["valu"] and not c["op"].startswith(TRANS) and V(pw) & c["r"]: up(1, "trans->valu")
        if p["op"].startswith(TRANS) and (c["mfma"]) and V(pw) & c["r"]: up(2, "trans->mfma")
        if p["op"].startswith("v_dot") and (c["valu"] or c["vmem"] or c["ds"] or c["mfma"]) and V(pw) & (c["r"] | c["w"]):
            same = c["op"] == p["op"] and len(c["toks"]) == 4 and regs(c["toks"][3]) == pw and not (V(pw) & (regs(c["toks"][1]) | regs(c["toks"][2])))
            if not same: up(3, "dot->other")
        if ("exec", 0) in pw:
            if c["dpp"]: up(5, "valu exec->dpp")
            if c["mfma"] or c["op"].startswith(("v_readlane", "v_readfirstlane", "v_writelane", "v_permlane")): up(4, "valu exec")
    if p["mfma"]:
        k = passes(p["op"]); D = p["w"]
        if c["mfma"]:
            if c["ab"] & D: up({4: 8, 8: 12}[k], "mfma D->AB")
            if c["c"] & D and not (c["c"] == D and passes(c["op"]) == k): up({4: 6, 8: 10}[k], "mfma D->C partial")
            if c["w"] & D and not (c["c"] & D): up({4: 6, 8: 10}[k], "mfma D->D waw(conservative)")
        elif (c["valu"] or c["vmem"] or c["ds"]) and D & (c["r"] | c["w"]): up({4: 8, 8: 12}[k], "mfma D->valu/mem")
        if c["valu"] and p["c"] & c["w"]: up({4: 3, 8: 7}[k], "mfma C war")
    if p["salu"] and ("m0", 0) in p["w"] and c.get("ldsdma"): up(1, "m0->ldsdma")
    if p.get("wide") and p["wide"] & c["w"]: up(2 if c["valu"] else 1, "wide store war")
    return n, why
def check(text):
    ins = []
    for ln, line in enumerate(text.split("\n"), 1):
        d = parse(line)
        if d: d["ln"] = ln; ins.append(d)
    probs = []
    for i, c in enumerate(ins):
        dist = 0
        for j in range(i - 1, max(-1, i - 24), -1):
            p = ins[j]
            if p["op"] in ("s_branch", "s_setpc_b64", "s_endpgm"): break
            n, why = need(p, c)
            if n > dist: probs.append("line %d: %s  <- line %d: %s : need %d have %d (%s)" % (c["ln"], c["line"], p["ln"], p["line"], n, dist, why))
            dist += states(p)
            if dist >= 20: break
    return probs
if __name__ == "__main__":
    import sys
    for p in check(open(sys.argv[1]).read()): print(p)
```

```python
import sys, os
sys.path.insert(0, os.path.dirname(os.path.abspath(__file__)))
import hazard
KN = "concat_heads__sliding_block_cached__gqa_block_cached__decode"

HEADER = open(os.path.join(os.path.dirname(os.path.abspath(__file__)), "header.txt")).read()

def gen(stamps=False, D=3, phaseB=256, phaseA=128, T1=26, T2=44, pol="nt", NTS=8, sleep=1, dbgdump=False):
    L = []
    def e(s=""):
        for x in s.split("\n"): L.append(x)
    NT_A, NT_B = 8, 64
    NT = NT_A + NT_B
    RING = NTS * 16384
    LB = RING
    O_LANDED, O_NEXT, O_CNTQ, O_CNTM = 0, 16, 32, 36
    O_QB = 64
    O_SCR = 1088
    LDS_BYTES = RING + 1088 + 6400
    WS_QX, WS_H1, WS_H2 = 0, 0x10000, 0x10000 + 512 * 1152
    WS_SIZE = WS_H2 + 512 * 1152
    LOG2E = 0x3fb8aa3b
    SCALE = 0x3db504f3
    NRED = 36
    sW, sH, sS = 3, 30, 31
    sBOUND = 33
    sKD, sVD = 36, 40
    sOFF, sOFF2, sLIN, sBASE, sMASK, sSLOT, sJ, sTI, sFREE, sTMP, sTMP2 = 44, 45, 46, 47, 48, 49, 50, 51, 52, 53, 54
    sWSD, sXD, sQD, sOD, sOUTD = 56, 60, 64, 68, 72
    sM1, sM2, sM3, sMG = 76, 78, 80, 82
    sAL = 84
    sRET, sRET2 = 86, 88
    sT, sEND, sNEED, sLAND, sB, sC = 90, 91, 92, 93, 94, 95
    sLOG2E, sSCALE, sPLO, sPHI = 96, 97, 98, 99
    sCST, sCCNT = 34, 35
    sST = 44
    vL = 0
    vQ, vK, vV, vO, vS, vP, vW, vWR = 8, 24, 56, 88, 120, 128, 132, 164
    vAK0, vAV0, vAK, vAV = 196, 197, 198, 202
    vM, vMC, vLS, vPM = 210, 211, 212, 213
    vT = 217
    vLB, vX, vAH1, vAH1L, vAWO, vAH2, vAMD, vAML = 232, 233, 234, 235, 236, 237, 238, 239
    NV = 240
    stamp_n = [0]
    def stamp(idx):
        if stamps:
            e("s_memrealtime s[100:101]"); e("s_waitcnt lgkmcnt(0)")
            e("v_writelane_b32 v%d, s100, %d" % (NV, 2 * idx)); e("v_writelane_b32 v%d, s101, %d" % (NV, 2 * idx + 1))
    def stamp_flush(role):
        if stamps:
            e("s_add_u32 s44, s28, 0x10000000"); e("s_addc_u32 s45, s29, 0")
            e("s_lshl_b32 s46, s2, 8"); e("s_lshl_b32 s47, s%d, 6" % sW); e("s_add_u32 s46, s46, s47")
            e("v_lshl_add_u32 v1, v%d, 2, s46" % vL)
            e("s_mov_b64 exec, 0xffff")
            e("global_store_dword v1, v%d, s[44:45]" % NV)
            e("s_mov_b64 exec, -1")
    uid = [0]
    def lab(n):
        uid[0] += 1; return "L_%s_%d" % (n, uid[0])
    def bound():
        e("s_sub_u32 s%d, s%d, 1" % (sBOUND, sBOUND)); e("s_cbranch_scc1 L_end")
    def srd(d, p, n):
        e("s_mov_b32 s%d, s%d" % (d, p)); e("s_mov_b32 s%d, s%d" % (d + 1, p + 1))
        e("s_mov_b32 s%d, %s" % (d + 2, n)); e("s_mov_b32 s%d, 0x20000" % (d + 3))
    def vr(b, n): return "v[%d:%d]" % (b, b + n - 1)

    e(HEADER.rstrip())
    e("; @launch grid=(256,1,1) block=(256,1,1) lds=%d" % LDS_BYTES)
    e('.amdgcn_target "amdgcn-amd-amdhsa--gfx950"')
    e(".text\n.globl %s_kernel\n.p2align 8\n.type %s_kernel,@function\n%s_kernel:" % (KN, KN, KN))
    e("s_cmp_ge_u32 s2, 256")
    e("s_cbranch_scc1 L_end")
    e("s_load_dwordx16 s[4:19], s[0:1], 0")
    e("s_load_dwordx8 s[20:27], s[0:1], 64")
    e("s_load_dwordx2 s[28:29], s[0:1], 96")
    e("v_lshrrev_b32 v1, 6, v0")
    e("v_and_b32 v%d, 63, v0" % vL)
    e("v_readfirstlane_b32 s%d, v1" % sW)
    e("s_lshr_b32 s%d, s2, 4" % sH)
    e("s_and_b32 s%d, s2, 15" % sS)
    e("s_mov_b32 s%d, 0x200000" % sBOUND)
    if stamps:
        e("v_mov_b32 v%d, 0" % NV); e("s_waitcnt lgkmcnt(0)"); stamp(0)
    e("s_cmp_lg_u32 s%d, 0" % sW)
    e("s_cbranch_scc1 L_consumer")
    e("v_lshrrev_b32 v1, 4, v%d" % vL)
    e("v_lshlrev_b32 v2, 1, v1")
    e("v_xor_b32 v2, v2, v%d" % vL)
    e("v_and_b32 v2, 15, v2")
    e("v_lshlrev_b32 v2, 4, v2")
    e("v_lshl_add_u32 v2, v1, 8, v2")
    e("v_xor_b32 v3, 0x80, v2")
    e("v_mov_b32 v%d, %d" % (vLB, LB))
    e("s_lshl_b32 s%d, s%d, 23" % (sBASE, sH))
    e("s_add_u32 s%d, s%d, 0x700000" % (sBASE, sBASE))
    e("s_mov_b32 s%d, 0xfffff" % sMASK)
    e("s_mul_i32 s%d, s%d, %d" % (sLIN, sH, phaseA * 1024))
    e("s_lshl_b32 s%d, s%d, 13" % (sTMP, sS))
    e("s_add_u32 s%d, s%d, s%d" % (sLIN, sLIN, sTMP))
    e("s_and_b32 s%d, s%d, s%d" % (sOFF, sLIN, sMASK))
    e("s_add_u32 s%d, s%d, s%d" % (sOFF, sOFF, sBASE))
    e("s_mov_b32 s%d, 0" % sSLOT)
    e("s_mov_b32 s%d, 0" % sTI)
    e("s_mov_b32 s%d, 0" % sFREE)
    e("s_waitcnt lgkmcnt(0)")
    srd(sKD, 6, "0x8000000"); srd(sVD, 8, "0x8000000")
    def issue(d):
        e("s_mov_b32 m0, s%d" % sSLOT)
        e("s_add_u32 s%d, s%d, 4096" % (sOFF2, sOFF))
        for i in range(4):
            e("buffer_load_dwordx4 v%d, s[%d:%d], s%d offen offset:%d %s lds" % (2 + (i & 1), d, d + 3, sOFF, i * 1024, pol))
        e("s_add_u32 m0, s%d, 4096" % sSLOT)
        e("s_add_u32 s%d, s%d, 8192" % (sSLOT, sSLOT))
        for i in range(4):
            e("buffer_load_dwordx4 v%d, s[%d:%d], s%d offen offset:%d %s lds" % (2 + (i & 1), d, d + 3, sOFF2, i * 1024, pol))
        e("s_and_b32 s%d, s%d, %d" % (sSLOT, sSLOT, RING - 1))
    def advance(static_t=None):
        e("s_add_u32 s%d, s%d, 1" % (sTI, sTI))
        e("s_add_u32 s%d, s%d, 0x20000" % (sLIN, sLIN))
        if static_t is None:
            l = lab("nosw")
            e("s_cmp_lg_u32 s%d, %d" % (sTI, NT_A)); e("s_cbranch_scc1 %s" % l)
            e("s_mov_b32 s%d, s16" % sKD); e("s_mov_b32 s%d, s17" % (sKD + 1))
            e("s_mov_b32 s%d, s18" % sVD); e("s_mov_b32 s%d, s19" % (sVD + 1))
            e("s_lshl_b32 s%d, s%d, 23" % (sBASE, sH))
            e("s_mov_b32 s%d, 0x7fffff" % sMASK)
            e("s_mul_i32 s%d, s%d, %d" % (sLIN, sH, phaseB * 1024))
            e("s_lshl_b32 s%d, s%d, 13" % (sTMP, sS))
            e("s_add_u32 s%d, s%d, s%d" % (sLIN, sLIN, sTMP))
            e("%s:" % l)
        e("s_and_b32 s%d, s%d, s%d" % (sOFF, sLIN, sMASK))
        e("s_add_u32 s%d, s%d, s%d" % (sOFF, sOFF, sBASE))
    for j in range(D):
        if j and j % 2 == 0: advance(static_t=j // 2)
        issue(sKD if j % 2 == 0 else sVD)
    e("s_mov_b32 s%d, 0" % sJ)
    e("s_barrier")
    def publish():
        e("s_add_u32 s%d, s%d, 1" % (sJ, sJ))
        e("v_mov_b32 v4, s%d" % sJ)
        e("ds_write_b32 v%d, v4 offset:%d" % (vLB, O_LANDED))
    def step(isK):
        if isK:
            advance()
            e("s_cmp_ge_u32 s%d, %d" % (sTI, NT)); e("s_cbranch_scc1 L_ld_drain")
            ok = lab("free"); sp = lab("fspin")
            e("s_cmp_lt_u32 s%d, s%d" % (sTI, sFREE)); e("s_cbranch_scc1 %s" % ok)
            e("%s:" % sp)
            e("ds_read_b96 v[8:10], v%d offset:%d" % (vLB, O_NEXT))
            e("s_waitcnt lgkmcnt(0)")
            e("v_min3_u32 v8, v8, v9, v10")
            e("s_nop 0")
            e("v_readfirstlane_b32 s%d, v8" % sFREE)
            e("s_add_u32 s%d, s%d, %d" % (sFREE, sFREE, NTS))
            e("s_cmp_lt_u32 s%d, s%d" % (sTI, sFREE)); e("s_cbranch_scc1 %s" % ok)
            e("s_waitcnt vmcnt(0)")
            e("s_lshl_b32 s%d, s%d, 1" % (sTMP, sTI))
            e("v_mov_b32 v4, s%d" % sTMP)
            e("ds_write_b32 v%d, v4 offset:%d" % (vLB, O_LANDED))
            bound(); e("s_sleep %d" % sleep); e("s_branch %s" % sp)
            e("%s:" % ok)
        e("s_waitcnt vmcnt(%d)" % ((D - 1) * 8))
        e("s_lshl_b32 s%d, s%d, 1" % (sTMP, sTI))
        k = (0 if isK else 1) - D + 1
        e("s_add_i32 s%d, s%d, %d" % (sTMP, sTMP, k))
        e("s_max_u32 s%d, s%d, s%d" % (sJ, sJ, sTMP))
        e("v_mov_b32 v4, s%d" % sJ)
        e("ds_max_u32 v%d, v4 offset:%d" % (vLB, O_LANDED))
        issue(sKD if isK else sVD)
    e("L_ld_loop:")
    if D % 2: step(False); step(True)
    else: step(True); step(False)
    e("s_branch L_ld_loop")
    e("L_ld_drain:")
    for k in range(D - 1, -1, -1):
        if k * 8 >= (D - 0) * 8: continue
        e("s_waitcnt vmcnt(%d)" % (k * 8))
        e("v_mov_b32 v4, %d" % (2 * NT - k))
        e("ds_max_u32 v%d, v4 offset:%d" % (vLB, O_LANDED))
    stamp(1)
    e("s_cmp_ge_u32 s2, %d" % NRED)
    e("s_cbranch_scc1 L_ld_done")
    srd(sWSD, 28, WS_SIZE); srd(sOUTD, 24, 2304)
    e("s_mov_b32 s%d, 1" % sB)
    e("s_call_b64 s[%d:%d], L_reduce" % (sRET, sRET + 1))
    e("L_ld_done:")
    stamp(2); stamp_flush(0)
    e("L_end:")
    e("s_endpgm")

    e("L_consumer:")
    e("s_sub_u32 s%d, s%d, 1" % (sC, sW))
    e("v_mov_b32 v%d, %d" % (vLB, LB))
    e("v_mov_b32 v2, 0"); e("v_mov_b32 v3, 0"); e("v_mov_b32 v4, 0"); e("v_mov_b32 v5, 0")
    e("v_mov_b32 v%d, 0" % vT); e("v_mov_b32 v%d, 1" % (vT + 1)); e("v_mov_b32 v%d, 2" % (vT + 2)); e("v_mov_b32 v%d, 0" % (vT + 3))
    e("ds_write_b128 v%d, v[2:5] offset:%d" % (vLB, O_LANDED))
    e("ds_write_b128 v%d, v[2:5] offset:%d" % (vLB, O_CNTQ))
    assert vT % 2 == 1
    e("v_mov_b32 v6, 0"); e("v_mov_b32 v7, 1");
    e("ds_write_b64 v%d, v[6:7] offset:%d" % (vLB, O_NEXT))
    e("ds_write_b32 v%d, v%d offset:%d" % (vLB, vT + 2, O_NEXT + 8))
    rW, rX, rACC = 24, 72, 80
    e("v_lshrrev_b32 v1, 3, v%d" % vL)
    e("v_and_b32 v2, 7, v%d" % vL)
    e("v_mul_u32_u24 v3, 24, v1")
    e("v_mul_u32_u24 v4, %d, v1" % (12 * 8192))
    e("v_lshl_add_u32 v4, v2, 4, v4")
    e("s_lshr_b32 s%d, s%d, 3" % (sST, sS))
    e("s_mul_i32 s%d, s%d, 288" % (sST + 1, sST))
    e("s_mul_i32 s%d, s%d, 96" % (sST + 2, sC))
    e("s_add_u32 s%d, s%d, s%d" % (sST + 1, sST + 1, sST + 2))
    e("s_lshl_b32 s%d, s%d, 1" % (sST + 2, sST + 1))
    e("s_lshl_b32 s%d, s%d, 13" % (sST + 3, sST + 1))
    e("s_lshl_b32 s%d, s%d, 9" % (sST + 4, sH))
    e("s_and_b32 s%d, s%d, 3" % (sST + 5, sS))
    e("s_lshl_b32 s%d, s%d, 7" % (sST + 5, sST + 5))
    e("s_add_u32 s%d, s%d, s%d" % (sST + 3, sST + 3, sST + 4))
    e("s_add_u32 s%d, s%d, s%d" % (sST + 3, sST + 3, sST + 5))
    e("s_bitcmp1_b32 s%d, 2" % sS)
    e("s_waitcnt lgkmcnt(0)")
    e("s_cselect_b32 s%d, s14, s4" % sXD); e("s_cselect_b32 s%d, s15, s5" % (sXD + 1))
    e("s_cselect_b32 s%d, s20, s10" % sQD); e("s_cselect_b32 s%d, s21, s11" % (sQD + 1))
    e("s_mov_b32 s%d, 1152" % (sXD + 2)); e("s_mov_b32 s%d, 0x20000" % (sXD + 3))
    e("s_mov_b32 s%d, 4718592" % (sQD + 2)); e("s_mov_b32 s%d, 0x20000" % (sQD + 3))
    for i in range(3):
        e("buffer_load_dwordx2 %s, v3, s[%d:%d], s%d offen offset:%d" % (vr(rX + 2 * i, 2), sXD, sXD + 3, sST + 2, 8 * i))
    for i in range(12):
        e("buffer_load_dwordx4 %s, v4, s[%d:%d], s%d offen %s" % (vr(rW + 4 * i, 4), sQD, sQD + 3, sST + 3, pol))
        if i < 11: e("s_add_u32 s%d, s%d, 8192" % (sST + 3, sST + 3))
    srd(sWSD, 28, WS_SIZE); srd(sOUTD, 24, 2304)
    e("v_cmp_le_u32 vcc, 24, v%d" % vL)
    e("v_lshlrev_b32 v5, 4, v%d" % vL)
    e("v_add_u32 v6, %d, v5" % (256 * 1152 - 384))
    e("v_cndmask_b32 v5, v5, v6, vcc")
    for i in range(4): e("v_mov_b32 v%d, -1" % (vT + 1 + i))
    e("s_mul_i32 s%d, s%d, 384" % (sST + 4, sC))
    e("s_mul_i32 s%d, s2, 1152" % (sST + 5))
    e("s_add_u32 s%d, s%d, s%d" % (sST + 5, sST + 5, sST + 4))
    e("s_add_u32 s%d, s%d, %d" % (sST + 5, sST + 5, WS_H1))
    e("s_lshl_b32 s%d, s%d, 7" % (sST + 6, sST))
    e("s_lshl_b32 s%d, s%d, 3" % (sST + 7, sH))
    e("s_add_u32 s%d, s%d, s%d" % (sST + 6, sST + 6, sST + 7))
    e("s_and_b32 s%d, s%d, 7" % (sST + 7, sS))
    e("s_add_u32 s%d, s%d, s%d" % (sST + 6, sST + 6, sST + 7))
    e("s_mul_i32 s32, s%d, 1152" % (sST + 6))
    e("s_add_u32 s32, s32, %d" % WS_H2)
    e("s_add_u32 s%d, s32, s%d" % (sST + 6, sST + 4))
    e("s_mov_b32 exec_hi, 0xffff")
    e("buffer_store_dwordx4 %s, v5, s[%d:%d], s%d offen sc1" % (vr(vT + 1, 4), sWSD, sWSD + 3, sST + 5))
    e("buffer_store_dwordx4 %s, v5, s[%d:%d], s%d offen sc1" % (vr(vT + 1, 4), sWSD, sWSD + 3, sST + 6))
    e("s_mov_b64 exec, -1")
    e("s_waitcnt lgkmcnt(0)")
    e("s_barrier")
    e("s_mov_b32 s%d, 0xcccccccc" % sM1); e("s_mov_b32 s%d, 0xcccccccc" % (sM1 + 1))
    e("s_mov_b32 s%d, 0xf0f0f0f0" % sM2); e("s_mov_b32 s%d, 0xf0f0f0f0" % (sM2 + 1))
    e("s_mov_b32 s%d, 0xff00ff00" % sM3); e("s_mov_b32 s%d, 0xff00ff00" % (sM3 + 1))
    e("s_mov_b32 s%d, 0xffff0000" % sMG); e("s_mov_b32 s%d, 0xffff0000" % (sMG + 1))
    e("s_mov_b32 s%d, %#x" % (sLOG2E, LOG2E)); e("s_mov_b32 s%d, %#x" % (sSCALE, SCALE))
    e("s_mov_b32 s%d, 0x05040100" % sPLO); e("s_mov_b32 s%d, 0x07060302" % sPHI)
    e("v_and_b32 v5, 15, v%d" % vL)
    e("v_lshrrev_b32 v6, 4, v%d" % vL)
    e("v_and_b32 v7, 7, v5"); e("v_lshlrev_b32 v7, 1, v7"); e("v_xor_b32 v7, v7, v6")
    e("v_lshlrev_b32 v7, 4, v7"); e("v_lshl_add_u32 v%d, v5, 8, v7" % vAK0)
    e("v_lshrrev_b32 v7, 2, v5"); e("v_lshl_add_u32 v7, v6, 2, v7")
    e("v_and_b32 v%d, 7, v7" % vT); e("v_lshlrev_b32 v%d, 5, v%d" % (vT, vT)); e("v_lshl_add_u32 v7, v7, 8, v%d" % vT)
    e("v_and_b32 v%d, 3, v5" % vT); e("v_lshl_add_u32 v7, v%d, 3, v7" % vT); e("v_add_u32 v%d, 0x2000, v7" % vAV0)
    e("v_mov_b32 v7, 0xffff"); e("v_mov_b32 v%d, 0xffff0000" % vT)
    e("v_cndmask_b32 v7, v7, v%d, s[%d:%d]" % (vT, sM1, sM1 + 1))
    e("v_lshrrev_b32 v%d, 2, v5" % vT)
    for p in range(4):
        e("v_cmp_eq_u32 vcc, %d, v%d" % (p, vT)); e("s_nop 1"); e("v_cndmask_b32 v%d, 0, v7, vcc" % (vPM + p))
    e("v_mul_u32_u24 v%d, 1152, v5" % vAH1L)
    e("v_lshl_add_u32 v%d, v6, 5, v%d" % (vAH1, vAH1L))
    e("s_lshl_b32 s%d, s%d, 4" % (sCST, sC))
    e("s_cmp_eq_u32 s%d, 2" % sC); e("s_cselect_b32 s%d, 4, 16" % sCCNT)
    e("s_cmp_eq_u32 s%d, 0" % sST); e("s_cbranch_scc1 L_sc0")
    e("s_sub_u32 s%d, s%d, 12" % (sCST, sCST))
    e("s_cmp_eq_u32 s%d, 0" % sC); e("s_cselect_b32 s%d, 4, 16" % sCCNT); e("s_cselect_b32 s%d, 0, s%d" % (sCST, sCST))
    e("L_sc0:")
    e("s_sub_u32 s%d, s%d, 1" % (sST + 8, sCCNT))
    e("v_min_u32 v7, s%d, v5" % (sST + 8))
    e("v_mul_u32_u24 v%d, %d, v6" % (vT, 8 * 1152))
    e("v_lshl_add_u32 v%d, v7, 4, v%d" % (vAWO, vT))
    e("v_lshlrev_b32 v7, 5, v5"); e("v_lshl_add_u32 v%d, v6, 4, v7" % vAH2)
    e("s_mul_i32 s%d, s%d, 1056" % (sST + 8, sC)); e("s_add_u32 s%d, s%d, %d" % (sST + 8, sST + 8, LB + O_SCR))
    e("v_lshrrev_b32 v7, 5, v%d" % vL); e("v_lshlrev_b32 v7, 9, v7")
    e("v_and_b32 v%d, 31, v%d" % (vT, vL)); e("v_lshl_add_u32 v7, v%d, 2, v7" % vT); e("v_add_u32 v%d, s%d, v7" % (vAMD, sST + 8))
    e("v_and_b32 v7, 1, v%d" % vL); e("v_lshlrev_b32 v7, 3, v7"); e("v_add_u32 v%d, s%d, v7" % (vAML, sST + 8))
    for a in range(8): e("v_mov_b32 v%d, 0" % (rACC + a))
    for pr in range(6):
        e("s_waitcnt vmcnt(%d)" % (2 + 10 - 2 * pr))
        for d in range(4):
            lo, hi = rW + 8 * pr + d, rW + 8 * pr + 4 + d
            e("v_perm_b32 v%d, v%d, v%d, s%d" % (vT + 2 * d, hi, lo, sPLO))
            e("v_perm_b32 v%d, v%d, v%d, s%d" % (vT + 2 * d + 1, hi, lo, sPHI))
        for a in range(8):
            e("v_dot2_f32_bf16 v%d, v%d, v%d, v%d" % (rACC + a, vT + a, rX + pr, rACC + a))
    e("s_lshl_b32 s%d, s%d, 11" % (sST + 8, sC)); e("s_add_u32 s%d, s%d, %d" % (sST + 8, sST + 8, LB + O_SCR))
    e("v_lshl_add_u32 v7, v%d, 5, s%d" % (vL, sST + 8))
    e("s_nop 0")
    e("ds_write_b128 v7, %s" % vr(rACC, 4)); e("ds_write_b128 v7, %s offset:16" % vr(rACC + 4, 4))
    e("v_mov_b32 v1, 1")
    e("s_waitcnt vmcnt(0) lgkmcnt(0)")
    e("s_mov_b64 exec, 1"); e("ds_add_rtn_u32 v2, v%d, v1 offset:%d" % (vLB, O_CNTQ)); e("s_mov_b64 exec, -1")
    e("s_waitcnt lgkmcnt(0)")
    e("v_readfirstlane_b32 s%d, v2" % (sST + 8))
    e("s_cmp_lg_u32 s%d, 2" % (sST + 8)); e("s_cbranch_scc1 L_qwait")
    e("v_lshl_add_u32 v7, v%d, 2, v%d" % (vL, vLB))
    for r in range(24): e("ds_read_b32 v%d, v7 offset:%d" % (rW + r, O_SCR + r * 256))
    e("s_lshl_b32 s%d, s%d, 12" % (sST + 8, sH)); e("s_lshl_b32 s%d, s%d, 8" % (sST + 9, sS))
    e("s_add_u32 s%d, s%d, s%d" % (sST + 8, sST + 8, sST + 9))
    e("v_lshlrev_b32 v7, 2, v%d" % vL)
    e("s_waitcnt lgkmcnt(0)")
    n = 24
    while n > 1:
        h2 = n // 2
        for r in range(h2): e("v_add_f32 v%d, v%d, v%d" % (rW + r, rW + r, rW + n - h2 + r))
        n -= h2
    e("buffer_store_dword v%d, v7, s[%d:%d], s%d offen sc1" % (rW, sWSD, sWSD + 3, sST + 8))
    e("v_mov_b32 v2, s2")
    e("s_waitcnt vmcnt(0)")
    e("s_mov_b64 exec, 1"); e("global_store_byte v2, v1, s[26:27] sc1"); e("s_mov_b64 exec, -1")
    stamp(1)
    e("L_qwait:")
    e("s_lshl_b32 s%d, s%d, 4" % (sST + 8, sH))
    e("v_mov_b32 v2, s%d" % (sST + 8))
    e("L_qspin:")
    e("global_load_dwordx4 v[4:7], v2, s[26:27] sc1")
    e("s_waitcnt vmcnt(0)")
    e("v_and_b32 v4, v4, v5"); e("v_and_b32 v6, v6, v7"); e("v_and_b32 v4, v4, v6")
    e("v_cmp_ne_u32 vcc, 0x01010101, v4")
    e("s_cbranch_vccz L_qready")
    bound(); e("s_sleep %d" % sleep); e("s_branch L_qspin")
    e("L_qready:")
    e("s_lshl_b32 s%d, s%d, 12" % (sST + 8, sH))
    e("v_lshlrev_b32 v7, 4, v%d" % vL)
    for j in range(4):
        e("buffer_load_dwordx4 %s, v7, s[%d:%d], s%d offen offset:%d sc1" % (vr(rW + 4 * j, 4), sWSD, sWSD + 3, sST + 8, j * 1024))
    e("v_lshl_add_u32 v7, v%d, 3, v%d" % (vL, vLB))
    e("s_waitcnt vmcnt(0)")
    for b in range(2):
        for d in range(4): e("v_add_f32 v%d, v%d, v%d" % (rW + 4 * b + d, rW + 4 * b + d, rW + 8 + 4 * b + d))
        e("v_cvt_pk_bf16_f32 v%d, v%d, v%d" % (rW + 16 + 2 * b, rW + 4 * b, rW + 4 * b + 1))
        e("v_cvt_pk_bf16_f32 v%d, v%d, v%d" % (rW + 17 + 2 * b, rW + 4 * b + 2, rW + 4 * b + 3))
        e("ds_write_b64 v7, %s offset:%d" % (vr(rW + 16 + 2 * b, 2), O_QB + b * 512))
    e("v_and_b32 v5, 1, v%d" % vL); e("v_lshlrev_b32 v5, 8, v5"); e("v_lshrrev_b32 v6, 4, v%d" % vL)
    e("v_lshl_add_u32 v5, v6, 4, v5"); e("v_add_u32 v%d, v5, v%d" % (vX, vLB))
    stamp(2)
    def wo_srd(p):
        srd(sOD, p, 4718592)
    e("s_lshl_b32 s%d, s%d, 3" % (sST + 8, sH)); e("s_and_b32 s%d, s%d, 7" % (sST + 9, sS)); e("s_add_u32 s%d, s%d, s%d" % (sST + 8, sST + 8, sST + 9))
    e("s_mul_i32 s%d, s%d, %d" % (sST + 8, sST + 8, 32 * 1152))
    e("s_mul_i32 s%d, s%d, 576" % (sST + 9, sST)); e("s_add_u32 s%d, s%d, s%d" % (sST + 8, sST + 8, sST + 9))
    e("s_lshl_b32 s%d, s%d, 4" % (sST + 9, sCST)); e("s_add_u32 s55, s%d, s%d" % (sST + 8, sST + 9))
    def call(l): e("s_call_b64 s[%d:%d], %s" % (sRET, sRET + 1, l))
    e("s_mov_b32 s%d, s%d" % (sT, sC)); e("s_mov_b32 s%d, 0" % sLAND)
    e("s_mov_b32 s%d, 0" % sB)
    wo_srd(12); call("L_woload")
    call("L_begin")
    e("s_mov_b32 s%d, %d" % (sEND, NT_A)); call("L_tiles")
    stamp(3)
    call("L_merge")
    e("s_mov_b32 s%d, 1" % sB)
    call("L_begin")
    e("s_mov_b32 s%d, %d" % (sEND, T1)); call("L_tiles")
    call("L_woperm")
    e("s_mov_b32 s%d, 0" % sB)
    call("L_hop1")
    wo_srd(22); call("L_woload")
    e("s_mov_b32 s%d, %d" % (sEND, T2)); call("L_tiles")
    call("L_woperm")
    e("s_cmp_ge_u32 s2, %d" % NRED); e("s_cbranch_scc1 L_nored")
    e("s_cmp_lg_u32 s%d, 0" % sC); e("s_cbranch_scc1 L_nored")
    call("L_reduce")
    e("L_nored:")
    e("s_mov_b32 s%d, 1" % sB)
    e("s_mov_b32 s%d, %d" % (sEND, NT)); call("L_tiles")
    stamp(4)
    call("L_merge")
    stamp(5)
    call("L_hop1")
    stamp(6); stamp_flush(1)
    e("s_endpgm")
    ret = lambda: e("s_setpc_b64 s[%d:%d]" % (sRET, sRET + 1))

    e("L_begin:")
    e("s_lshl_b32 s%d, s%d, 9" % (sST + 8, sB))
    e("v_add_u32 v1, s%d, v%d" % (sST + 8, vX))
    e("s_waitcnt lgkmcnt(0)")
    for k in range(4): e("ds_read_b128 %s, v1 offset:%d" % (vr(vQ + 4 * k, 4), O_QB + k * 64))
    e("v_mov_b32 v%d, 0xff61b1e6" % vM)
    e("v_mov_b32 v%d, 0" % vMC); e("v_mov_b32 v%d, 0" % vLS)
    for i in range(32): e("v_mov_b32 v%d, 0" % (vO + i))
    e("s_waitcnt lgkmcnt(0)")
    ret()

    e("L_woload:")
    e("s_add_u32 s%d, s55, %d" % (sST + 8, 4 * 1152))
    for i in range(8):
        e("buffer_load_dwordx4 %s, v%d, s[%d:%d], s%d offen offset:%d %s" % (vr(vWR + 4 * i, 4), vAWO, sOD, sOD + 3, 55 if i < 4 else sST + 8, (i % 4) * 1152, pol))
    ret()
    e("L_woperm:")
    e("s_waitcnt vmcnt(0)")
    for ee in range(8):
        for p in range(4):
            e("v_perm_b32 v%d, v%d, v%d, s%d" % (vW + 4 * ee + p, vWR + 4 * (2 * p + 1) + ee // 2, vWR + 4 * (2 * p) + ee // 2, sPHI if ee & 1 else sPLO))
    ret()

    def wait_landed(name):
        ok = lab(name + "ok"); sp = lab(name + "sp")
        e("s_cmp_ge_u32 s%d, s%d" % (sLAND, sNEED)); e("s_cbranch_scc1 %s" % ok)
        e("%s:" % sp)
        e("ds_read_b32 v1, v%d offset:%d" % (vLB, O_LANDED))
        e("s_waitcnt lgkmcnt(0)")
        e("v_readfirstlane_b32 s%d, v1" % sLAND)
        e("s_cmp_ge_u32 s%d, s%d" % (sLAND, sNEED)); e("s_cbranch_scc1 %s" % ok)
        bound(); e("s_sleep %d" % sleep); e("s_branch %s" % sp)
        e("%s:" % ok)
    e("L_tiles:")
    e("s_cmp_ge_u32 s%d, s%d" % (sT, sEND)); e("s_cbranch_scc1 L_tiles_ret")
    e("L_tile:")
    e("s_and_b32 s%d, s%d, %d" % (sST + 8, sT, NTS - 1)); e("s_lshl_b32 s%d, s%d, 14" % (sST + 8, sST + 8))
    e("s_lshl_b32 s%d, s%d, 1" % (sNEED, sT)); e("s_add_u32 s%d, s%d, 1" % (sNEED, sNEED))
    e("v_add_u32 v%d, s%d, v%d" % (vAK, sST + 8, vAK0))
    e("v_add_u32 v%d, s%d, v%d" % (vAV, sST + 8, vAV0))
    for k in range(1, 4): e("v_xor_b32 v%d, %d, v%d" % (vAK + k, k << 6, vAK))
    for cg in range(1, 8): e("v_xor_b32 v%d, %d, v%d" % (vAV + cg, cg << 5, vAV))
    wait_landed("k")
    for k in range(4):
        for blk in range(2):
            e("ds_read_b128 %s, v%d offset:%d" % (vr(vK + 16 * blk + 4 * k, 4), vAK + k, blk * 4096))
    e("s_add_u32 s%d, s%d, 1" % (sNEED, sNEED))
    for k in range(4):
        e("s_waitcnt lgkmcnt(%d)" % (6 - 2 * k))
        for blk in range(2):
            e("v_mfma_f32_16x16x32_bf16 %s, %s, %s, %s" % (vr(vS + 4 * blk, 4), vr(vK + 16 * blk + 4 * k, 4), vr(vQ + 4 * k, 4), "0" if k == 0 else vr(vS + 4 * blk, 4)))
    e("s_nop 6")
    t = vT
    e("v_cndmask_b32 v%d, v%d, v%d, s[%d:%d]" % (t, vS, vS + 1, sM1, sM1 + 1))
    e("v_cndmask_b32 v%d, v%d, v%d, s[%d:%d]" % (t + 1, vS + 2, vS + 3, sM1, sM1 + 1))
    e("v_cndmask_b32 v%d, v%d, v%d, s[%d:%d]" % (t + 2, vS + 4, vS + 5, sM1, sM1 + 1))
    e("v_cndmask_b32 v%d, v%d, v%d, s[%d:%d]" % (t + 3, vS + 6, vS + 7, sM1, sM1 + 1))
    e("v_cndmask_b32 v%d, v%d, v%d, s[%d:%d]" % (t, t, t + 1, sM2, sM2 + 1))
    e("v_cndmask_b32 v%d, v%d, v%d, s[%d:%d]" % (t + 2, t + 2, t + 3, sM2, sM2 + 1))
    e("v_cndmask_b32 v%d, v%d, v%d, s[%d:%d]" % (t, t, t + 2, sM3, sM3 + 1))
    e("v_cvt_pk_bf16_f32 v%d, v%d, v%d" % (t, t, t))
    e("v_and_b32 v%d, 0xffff0000, v%d" % (t, t))
    e("v_mul_f32 v%d, s%d, v%d" % (t, sSCALE, t))
    e("v_cvt_pk_bf16_f32 v%d, v%d, v%d" % (t, t, t))
    e("v_and_b32 v%d, 0xffff0000, v%d" % (t, t))
    e("v_cmp_gt_f32 vcc, v%d, v%d" % (t, vM))
    e("s_cbranch_vccnz L_newmax")
    e("L_maxok:")
    e("v_fma_f32 v%d, v%d, s%d, v%d" % (t, t, sLOG2E, vMC))
    e("v_exp_f32 v%d, v%d" % (t, t))
    wait_landed("v")
    for cg in range(8):
        for blk in range(2):
            e("ds_read_b64_tr_b16 %s, v%d offset:%d" % (vr(vV + 4 * cg + 2 * blk, 2), vAV + cg, blk * 4096))
    e("v_add_f32 v%d, v%d, v%d" % (vLS, vLS, t))
    e("v_cvt_pk_bf16_f32 v%d, v%d, v%d" % (t, t, t))
    for p in range(4): e("v_and_b32 v%d, v%d, v%d" % (vP + p, t, vPM + p))
    e("s_add_u32 s%d, s%d, 3" % (sT, sT))
    e("v_mov_b32 v2, s%d" % sT)
    e("s_lshl_b32 s%d, s%d, 2" % (sST + 8, sC))
    e("v_add_u32 v3, s%d, v%d" % (sST + 8, vLB))
    for cg in range(8):
        e("s_waitcnt lgkmcnt(%d)" % (14 - 2 * cg))
        if cg == 7: e("ds_write_b32 v3, v2 offset:%d" % O_NEXT)
        e("v_mfma_f32_16x16x32_bf16 %s, %s, %s, %s" % (vr(vO + 4 * cg, 4), vr(vP, 4), vr(vV + 4 * cg, 4), vr(vO + 4 * cg, 4)))
    e("s_cmp_lt_u32 s%d, s%d" % (sT, sEND)); e("s_cbranch_scc1 L_tile")
    e("L_tiles_ret:")
    ret()
    e("L_newmax:")
    e("v_max_f32 v%d, v%d, v%d" % (t + 1, t, vM))
    for r in (2, 4, 8):
        e("s_nop 1"); e("v_max_f32_dpp v%d, v%d, v%d row_ror:%d row_mask:0xf bank_mask:0xf" % (t + 1, t + 1, t + 1, r))
    for sw in ("16", "32"):
        e("v_mov_b32 v%d, v%d" % (t + 2, t + 1)); e("s_nop 1")
        e("v_permlane%s_swap_b32 v%d, v%d" % (sw, t + 1, t + 2)); e("v_max_f32 v%d, v%d, v%d" % (t + 1, t + 1, t + 2))
    e("v_sub_f32 v%d, v%d, v%d" % (t + 2, vM, t + 1))
    e("v_mul_f32 v%d, s%d, v%d" % (t + 2, sLOG2E, t + 2))
    e("v_exp_f32 v%d, v%d" % (t + 2, t + 2))
    e("v_mov_b32 v%d, v%d" % (vM, t + 1))
    e("v_mul_f32 v%d, s%d, v%d" % (vMC, sLOG2E, t + 1))
    e("v_readlane_b32 s%d, v%d, 0" % (sAL, t + 2)); e("v_readlane_b32 s%d, v%d, 1" % (sAL + 1, t + 2))
    e("v_sub_f32 v%d, 0, v%d" % (vMC, vMC))
    e("v_mul_f32 v%d, v%d, v%d" % (vLS, vLS, t + 2))
    for i in range(16): e("v_pk_mul_f32 %s, %s, s[%d:%d]" % (vr(vO + 2 * i, 2), vr(vO + 2 * i, 2), sAL, sAL + 1))
    e("s_branch L_maxok")

    e("L_merge:")
    e("s_mul_i32 s%d, s%d, %d" % (sST + 8, sB, 3 * 1056))
    e("v_add_u32 v4, s%d, v%d" % (sST + 8, vAMD)); e("v_add_u32 v5, s%d, v%d" % (sST + 8, vAML))
    e("v_mov_b32 v7, v%d" % vLS); e("v_mov_b32 v6, v%d" % vM)
    for r in (2, 4, 8):
        e("s_nop 1"); e("v_add_f32_dpp v7, v7, v7 row_ror:%d row_mask:0xf bank_mask:0xf" % r)
    for sw in ("16", "32"):
        e("v_mov_b32 v1, v7"); e("s_nop 1"); e("v_permlane%s_swap_b32 v7, v1" % sw); e("v_add_f32 v7, v7, v1")
    e("ds_write_b64 v5, v[6:7] offset:1024")
    for cg in range(8): e("v_pk_add_f32 %s, %s, %s" % (vr(vO + 4 * cg, 2), vr(vO + 4 * cg, 2), vr(vO + 4 * cg + 2, 2)))
    for cg in range(8): e("v_permlane32_swap_b32 v%d, v%d" % (vO + 4 * cg, vO + 4 * cg + 1))
    for cg in range(8): e("v_add_f32 v%d, v%d, v%d" % (vO + 4 * cg, vO + 4 * cg, vO + 4 * cg + 1))
    for c2 in range(4): e("v_permlane16_swap_b32 v%d, v%d" % (vO + 8 * c2, vO + 8 * c2 + 4))
    for c2 in range(4):
        e("v_add_f32 v%d, v%d, v%d" % (vO + 8 * c2, vO + 8 * c2, vO + 8 * c2 + 4))
        e("ds_write_b32 v4, v%d offset:%d" % (vO + 8 * c2, c2 * 128))
    e("s_lshl_b32 s%d, s%d, 2" % (sST + 9, sB)); e("v_add_u32 v3, s%d, v%d" % (sST + 9, vLB)); e("v_mov_b32 v1, 1")
    e("s_waitcnt lgkmcnt(0)")
    e("s_mov_b64 exec, 1"); e("ds_add_rtn_u32 v2, v3, v1 offset:%d" % O_CNTM); e("s_mov_b64 exec, -1")
    e("s_add_u32 s%d, s%d, %d" % (sST + 8, sST + 8, LB + O_SCR))
    e("v_lshl_add_u32 v4, v%d, 4, s%d" % (vL, sST + 8))
    e("v_lshrrev_b32 v5, 5, v%d" % vL); e("v_lshl_add_u32 v5, v5, 3, s%d" % (sST + 8))
    e("s_waitcnt lgkmcnt(0)")
    e("v_readfirstlane_b32 s%d, v2" % (sST + 9))
    e("s_cmp_lg_u32 s%d, 2" % (sST + 9)); e("s_cbranch_scc1 L_merge_ret")
    a = vK
    for c in range(3): e("ds_read_b64 %s, v5 offset:%d" % (vr(a + 2 * c, 2), c * 1056 + 1024))
    for c in range(3): e("ds_read_b128 %s, v4 offset:%d" % (vr(a + 8 + 4 * c, 4), c * 1056))
    e("s_lshl_b32 s%d, s%d, 8" % (sST + 9, sB)); e("s_add_u32 s%d, s%d, s2" % (sST + 9, sST + 9))
    e("s_mul_i32 s%d, s%d, 1152" % (sST + 9, sST + 9)); e("s_add_u32 s%d, s%d, %d" % (sST + 9, sST + 9, WS_H1))
    e("s_waitcnt lgkmcnt(3)")
    e("v_max3_f32 v6, v%d, v%d, v%d" % (a, a + 2, a + 4))
    for c in range(3): e("v_sub_f32 v%d, v%d, v6" % (a + 2 * c, a + 2 * c))
    for c in range(3): e("v_mul_f32 v%d, s%d, v%d" % (a + 2 * c, sLOG2E, a + 2 * c))
    for c in range(3): e("v_exp_f32 v%d, v%d" % (a + 2 * c, a + 2 * c))
    e("v_lshlrev_b32 v4, 4, v%d" % vL)
    e("v_mul_f32 v7, v%d, v%d" % (a, a + 1))
    e("v_fmac_f32 v7, v%d, v%d" % (a + 2, a + 3)); e("v_fmac_f32 v7, v%d, v%d" % (a + 4, a + 5))
    e("v_rcp_f32 v1, v7"); e("v_log_f32 v7, v7")
    e("v_lshrrev_b32 v5, 5, v%d" % vL)
    for c in range(3): e("v_mul_f32 v%d, v%d, v1" % (a + 2 * c, a + 2 * c))
    e("v_fmac_f32 v7, s%d, v6" % sLOG2E)
    e("v_lshlrev_b32 v5, 2, v5")
    e("s_waitcnt lgkmcnt(0)")
    for d in range(4): e("v_mul_f32 v%d, v%d, v%d" % (a + 8 + d, a + 8 + d, a))
    for d in range(4): e("v_fmac_f32 v%d, v%d, v%d" % (a + 8 + d, a + 12 + d, a + 2))
    for d in range(4): e("v_fmac_f32 v%d, v%d, v%d" % (a + 8 + d, a + 16 + d, a + 4))
    e("buffer_store_dwordx4 %s, v4, s[%d:%d], s%d offen sc1" % (vr(a + 8, 4), sWSD, sWSD + 3, sST + 9))
    e("s_mov_b32 exec_lo, 1"); e("s_mov_b32 exec_hi, 1")
    e("buffer_store_dword v7, v5, s[%d:%d], s%d offen offset:1024 sc1" % (sWSD, sWSD + 3, sST + 9))
    e("s_mov_b64 exec, -1")
    e("L_merge_ret:")
    ret()

    e("L_hop1:")
    e("s_lshl_b32 s%d, s%d, 4" % (sST + 8, sB)); e("s_add_u32 s%d, s%d, s%d" % (sST + 8, sST + 8, sH))
    e("s_mul_i32 s%d, s%d, %d" % (sST + 8, sST + 8, 16 * 1152)); e("s_add_u32 s%d, s%d, %d" % (sST + 8, sST + 8, WS_H1))
    e("s_bfe_u32 s%d, s%d, 0x10002" % (sST + 9, sS)); e("s_lshl_b32 s%d, s%d, 2" % (sST + 9, sST + 9))
    e("s_add_u32 s%d, s%d, s%d" % (sST + 9, sST + 9, sST + 8))
    e("s_and_b32 s%d, s%d, 7" % (sST + 10, sS)); e("s_lshl_b32 s%d, s%d, 7" % (sST + 10, sST + 10))
    e("s_add_u32 s%d, s%d, s%d" % (sST + 8, sST + 8, sST + 10))
    a = vK
    e("L_h1spin:")
    e("buffer_load_dwordx4 %s, v%d, s[%d:%d], s%d offen sc1" % (vr(a, 4), vAH1, sWSD, sWSD + 3, sST + 8))
    e("buffer_load_dwordx4 %s, v%d, s[%d:%d], s%d offen offset:16 sc1" % (vr(a + 4, 4), vAH1, sWSD, sWSD + 3, sST + 8))
    e("buffer_load_dword v%d, v%d, s[%d:%d], s%d offen offset:1024 sc1" % (a + 8, vAH1L, sWSD, sWSD + 3, sST + 9))
    e("s_waitcnt vmcnt(0)")
    e("v_max3_u32 v1, v%d, v%d, v%d" % (a, a + 1, a + 2))
    for i in range(3): e("v_max3_u32 v1, v1, v%d, v%d" % (a + 3 + 2 * i, a + 4 + 2 * i))
    e("v_cmp_eq_u32 vcc, -1, v1")
    e("s_cbranch_vccz L_h1ok")
    bound(); e("s_sleep %d" % sleep); e("s_branch L_h1spin")
    e("L_h1ok:")
    e("v_mov_b32 v1, v%d" % (a + 8))
    for r in (8, 4, 2, 1):
        e("s_nop 1"); e("v_max_f32_dpp v1, v1, v1 row_ror:%d row_mask:0xf bank_mask:0xf" % r)
    e("v_sub_f32 v1, v%d, v1" % (a + 8)); e("v_exp_f32 v1, v1"); e("s_nop 0"); e("v_mov_b32 v2, v1")
    for i in range(8): e("v_mul_f32 v%d, v%d, v1" % (a + i, a + i))
    for r in (8, 4, 2, 1):
        e("v_add_f32_dpp v2, v2, v2 row_ror:%d row_mask:0xf bank_mask:0xf" % r)
        for i in range(8): e("v_add_f32_dpp v%d, v%d, v%d row_ror:%d row_mask:0xf bank_mask:0xf" % (a + i, a + i, a + i, r))
    e("v_rcp_f32 v2, v2")
    e("s_mul_i32 s%d, s%d, %d" % (sST + 8, sB, 256 * 1152)); e("s_add_u32 s%d, s%d, s32" % (sST + 8, sST + 8))
    e("s_lshl_b32 s%d, s%d, 5" % (sST + 9, sCST)); e("s_add_u32 s%d, s%d, s%d" % (sST + 8, sST + 8, sST + 9))
    for i in range(8): e("v_mul_f32 v%d, v%d, v2" % (a + i, a + i))
    for p in range(4): e("v_cvt_pk_bf16_f32 v%d, v%d, v%d" % (a + 12 + p, a + 2 * p, a + 2 * p + 1))
    e("s_bfm_b32 s%d, s%d, 0" % (sST + 9, sCCNT)); e("s_mul_i32 s%d, s%d, 0x10001" % (sST + 9, sST + 9))
    for ee in range(8):
        e("v_mfma_f32_16x16x32_bf16 %s, %s, %s, 0" % (vr(vV + 4 * ee, 4), vr(a + 12, 4), vr(vW + 4 * ee, 4)))
    e("s_nop 4")
    for r in range(4): e("v_cndmask_b32 v%d, v%d, v%d, s[%d:%d]" % (a + 16 + r, vV + 4 * r, vV + 16 + 4 * r, sMG, sMG + 1))
    e("s_mov_b32 exec_lo, s%d" % (sST + 9)); e("s_mov_b32 exec_hi, 0")
    e("buffer_store_dwordx4 %s, v%d, s[%d:%d], s%d offen sc1" % (vr(a + 16, 4), vAH2, sWSD, sWSD + 3, sST + 8))
    e("s_mov_b64 exec, -1")
    ret()

    e("L_reduce:")
    e("v_lshlrev_b32 v1, 2, v%d" % vL)
    e("L_r0spin:")
    e("global_load_dword v2, v1, s[26:27] sc1")
    e("s_waitcnt vmcnt(0)")
    e("v_cmp_ne_u32 vcc, 0x01010101, v2")
    e("s_cbranch_vccz L_r0ok")
    bound(); e("s_sleep %d" % sleep); e("s_branch L_r0spin")
    e("L_r0ok:")
    e("v_lshrrev_b32 v1, 2, v%d" % vL); e("v_mul_u32_u24 v1, 1152, v1"); e("v_and_b32 v2, 3, v%d" % vL); e("v_lshl_add_u32 v1, v2, 4, v1")
    e("s_cmp_ge_u32 s2, 18"); e("s_cselect_b32 s%d, %d, 0" % (sST + 8, 128 * 1152 - 18 * 64))
    e("s_lshl_b32 s%d, s2, 6" % (sST + 9)); e("s_add_u32 s%d, s%d, s%d" % (sST + 8, sST + 8, sST + 9))
    e("s_mul_i32 s%d, s%d, %d" % (sST + 9, sB, 256 * 1152)); e("s_add_u32 s%d, s%d, s%d" % (sST + 8, sST + 8, sST + 9))
    e("s_add_u32 s%d, s%d, %d" % (sST + 8, sST + 8, WS_H2))
    a = vK
    e("L_r1spin:")
    e("s_mov_b32 s%d, s%d" % (sST + 9, sST + 8))
    for i in range(8):
        e("buffer_load_dwordx4 %s, v1, s[%d:%d], s%d offen sc1" % (vr(a + 4 * i, 4), sWSD, sWSD + 3, sST + 9))
        if i < 7: e("s_add_u32 s%d, s%d, %d" % (sST + 9, sST + 9, 16 * 1152))
    for i in range(8):
        e("s_waitcnt vmcnt(%d)" % (7 - i))
        if i == 0: e("v_max3_u32 v3, v%d, v%d, v%d" % (a, a + 1, a + 2)); e("v_max_u32 v3, v3, v%d" % (a + 3))
        else:
            e("v_max3_u32 v3, v3, v%d, v%d" % (a + 4 * i, a + 4 * i + 1)); e("v_max3_u32 v3, v3, v%d, v%d" % (a + 4 * i + 2, a + 4 * i + 3))
            e("v_pk_add_f32 %s, %s, %s" % (vr(a, 2), vr(a, 2), vr(a + 4 * i, 2)))
            e("v_pk_add_f32 %s, %s, %s" % (vr(a + 2, 2), vr(a + 2, 2), vr(a + 4 * i + 2, 2)))
    e("v_cmp_eq_u32 vcc, -1, v3")
    e("s_cbranch_vccz L_r1ok")
    bound(); e("s_sleep %d" % sleep); e("s_branch L_r1spin")
    e("L_r1ok:")
    for r in (4, 8):
        for i in range(4): e("v_add_f32_dpp v%d, v%d, v%d row_ror:%d row_mask:0xf bank_mask:0xf" % (a + i, a + i, a + i, r))
    e("s_mul_i32 s%d, s%d, 1152" % (sST + 8, sB)); e("s_lshl_b32 s%d, s2, 5" % (sST + 9)); e("s_add_u32 s%d, s%d, s%d" % (sST + 8, sST + 8, sST + 9))
    e("v_permlane32_swap_b32 v%d, v%d" % (a, a + 1)); e("v_permlane32_swap_b32 v%d, v%d" % (a + 2, a + 3))
    e("v_add_f32 v%d, v%d, v%d" % (a, a, a + 1)); e("v_add_f32 v%d, v%d, v%d" % (a + 2, a + 2, a + 3))
    e("v_lshrrev_b32 v3, 5, v%d" % vL); e("v_bfe_u32 v4, v%d, 4, 1" % vL)
    e("v_permlane16_swap_b32 v%d, v%d" % (a, a + 2))
    e("v_lshl_add_u32 v3, v4, 1, v3"); e("v_lshl_add_u32 v3, v2, 2, v3"); e("v_lshlrev_b32 v3, 1, v3")
    e("v_add_f32 v%d, v%d, v%d" % (a, a, a + 2))
    e("v_cvt_pk_bf16_f32 v%d, v%d, v%d" % (a, a, a))
    e("s_mov_b32 exec_lo, 0x000f000f"); e("s_mov_b32 exec_hi, 0x000f000f")
    e("buffer_store_short v%d, v3, s[%d:%d], s%d offen" % (a, sOUTD, sOUTD + 3, sST + 8))
    e("s_mov_b64 exec, -1")
    ret()

    nv = NV + (8 if stamps else 0)
    e('.section .rodata,"a"\n.p2align 6\n.amdhsa_kernel %s_kernel' % KN)
    e("  .amdhsa_next_free_vgpr %d\n  .amdhsa_next_free_sgpr 102\n  .amdhsa_accum_offset %d" % (nv, nv))
    e("  .amdhsa_group_segment_fixed_size 0\n  .amdhsa_kernarg_size 104\n  .amdhsa_user_sgpr_count 2\n  .amdhsa_user_sgpr_kernarg_segment_ptr 1\n  .amdhsa_system_sgpr_workgroup_id_x 1\n  .amdhsa_float_denorm_mode_32 3\n.end_amdhsa_kernel")
    txt = "\n".join(("    " + x if x and not x.endswith(":") and not x.startswith((";", ".", " ")) else x) for x in L) + "\n"
    return txt

if __name__ == "__main__":
    out = sys.argv[1]
    kw = {}
    for a in sys.argv[2:]:
        k, v = a.split("=")
        kw[k] = v if k == "pol" else int(v)
    t = gen(**kw)
    open(out, "w").write(t)
    for p in hazard.check(t): print("HAZARD", p)
```

```python
import sys, os
sys.path.insert(0, os.path.dirname(os.path.abspath(__file__)))
import hazard
KN = "concat_heads__sliding_block_cached__gqa_block_cached__decode"

HEADER = open(os.path.join(os.path.dirname(os.path.abspath(__file__)), "header.txt")).read()

def gen(stamps=False, D=3, phaseB=640, phaseA=128, T1=26, T2=44, pol="nt", NTS=8, sleep=1, clearfirst=1, wqpol="nt", nstatB=52, P0=3, barw=12, nocomp=0, prio=0, csleep=None):
    csleep = sleep if csleep is None else csleep
    L = []
    def e(s=""):
        for x in s.split("\n"): L.append(x)
    NT_A, NT_B = 8, 64
    NT = NT_A + NT_B
    RING = NTS * 16384
    LB = RING
    O_LANDED, O_NEXT, O_CNTQ, O_CNTM, O_QRDY = 0, 16, 32, 36, 44
    O_QB = 64
    O_SCR = 1088
    LDS_BYTES = RING + 1088 + 6400
    WS_QX, WS_H1, WS_H2 = 0, 0x10000, 0x10000 + 512 * 1152
    WS_NONCE = 0x8000
    WS_CTR = 0x9000
    dyn = nstatB < NT_B
    NSTAT = NT_A + nstatB
    NDYN = 16 * (NT_B - nstatB)
    O_TOTAL = 4
    sCTR, sTK = 56, 58
    WS_SIZE = WS_H2 + 512 * 1152
    sTAG = 55
    sWO = 32
    sH2 = 89
    LOG2E = 0x3fb8aa3b
    SCALE = 0x3db504f3
    NRED = 36
    sW, sH, sS = 3, 30, 31
    sBOUND = 33
    sKD, sVD = 36, 40
    sOFF, sOFF2, sLIN, sBASE, sMASK, sSLOT, sJ, sTI, sFREE, sTMP, sTMP2 = 44, 45, 46, 47, 48, 49, 50, 51, 52, 53, 54
    sWSD, sXD, sQD, sOD, sOUTD = 56, 60, 64, 68, 72
    sM1, sM2, sM3, sMG = 76, 78, 80, 82
    sAL = 84
    sRET, sRET2 = 86, 88
    sT, sEND, sNEED, sLAND, sB, sC = 90, 91, 92, 93, 94, 95
    sLOG2E, sSCALE, sPLO, sPHI = 96, 97, 98, 99
    sCST, sCCNT = 34, 35
    sST = 44
    vL = 0
    vQ, vK, vV, vO, vS, vP, vW, vWR = 8, 24, 56, 88, 120, 128, 132, 164
    vAK0, vAV0, vAK, vAV = 196, 197, 198, 202
    vM, vMC, vLS, vPM = 210, 211, 212, 213
    vT = 217
    vLB, vX, vAH1, vAH1L, vAWO, vAH2, vAMD, vAML = 232, 233, 234, 235, 236, 237, 238, 239
    NV = 240
    stamp_n = [0]
    def stamp(idx):
        if stamps:
            e("s_memrealtime s[100:101]"); e("s_waitcnt lgkmcnt(0)")
            e("v_writelane_b32 v%d, s100, %d" % (NV, 2 * idx)); e("v_writelane_b32 v%d, s101, %d" % (NV, 2 * idx + 1))
    def stamp_flush(role):
        if stamps:
            e("s_add_u32 s44, s28, 0x10000000"); e("s_addc_u32 s45, s29, 0")
            e("s_lshl_b32 s46, s2, 8"); e("s_lshl_b32 s47, s%d, 6" % sW); e("s_add_u32 s46, s46, s47")
            e("v_lshl_add_u32 v1, v%d, 2, s46" % vL)
            e("s_mov_b64 exec, 0xffff")
            e("global_store_dword v1, v%d, s[44:45]" % NV)
            e("s_mov_b64 exec, -1")
    uid = [0]
    def lab(n):
        uid[0] += 1; return "L_%s_%d" % (n, uid[0])
    def bound():
        e("s_sub_u32 s%d, s%d, 1" % (sBOUND, sBOUND)); e("s_cbranch_scc1 L_end")
    def srd(d, p, n):
        e("s_mov_b32 s%d, s%d" % (d, p)); e("s_mov_b32 s%d, s%d" % (d + 1, p + 1))
        e("s_mov_b32 s%d, %s" % (d + 2, n)); e("s_mov_b32 s%d, 0x20000" % (d + 3))
    def vr(b, n): return "v[%d:%d]" % (b, b + n - 1)

    e(HEADER.rstrip())
    e("; @launch grid=(256,1,1) block=(256,1,1) lds=%d" % LDS_BYTES)
    e('.amdgcn_target "amdgcn-amd-amdhsa--gfx950"')
    e(".text\n.globl %s_kernel\n.p2align 8\n.type %s_kernel,@function\n%s_kernel:" % (KN, KN, KN))
    e("s_cmp_ge_u32 s2, 256")
    e("s_cbranch_scc1 L_end")
    e("s_load_dwordx16 s[4:19], s[0:1], 0")
    e("s_load_dwordx8 s[20:27], s[0:1], 64")
    e("s_load_dwordx2 s[28:29], s[0:1], 96")
    e("v_lshrrev_b32 v1, 6, v0")
    e("v_and_b32 v%d, 63, v0" % vL)
    e("v_readfirstlane_b32 s%d, v1" % sW)
    e("s_lshr_b32 s%d, s2, 4" % sH)
    e("s_and_b32 s%d, s2, 15" % sS)
    e("s_mov_b32 s%d, 0x200000" % sBOUND)
    if stamps:
        e("v_mov_b32 v%d, 0" % NV); e("s_waitcnt lgkmcnt(0)"); stamp(0)
    e("s_cmp_lg_u32 s%d, 0" % sW)
    e("s_cbranch_scc1 L_consumer")
    if prio: e("s_setprio %d" % prio)
    e("v_lshrrev_b32 v1, 4, v%d" % vL)
    e("v_lshlrev_b32 v2, 1, v1")
    e("v_xor_b32 v2, v2, v%d" % vL)
    e("v_and_b32 v2, 15, v2")
    e("v_lshlrev_b32 v2, 4, v2")
    e("v_lshl_add_u32 v2, v1, 8, v2")
    e("v_xor_b32 v3, 0x80, v2")
    e("v_mov_b32 v%d, %d" % (vLB, LB))
    e("s_lshl_b32 s%d, s%d, 23" % (sBASE, sH))
    e("s_add_u32 s%d, s%d, 0x700000" % (sBASE, sBASE))
    e("s_mov_b32 s%d, 0xfffff" % sMASK)
    e("s_mul_i32 s%d, s%d, %d" % (sLIN, sH, phaseA * 1024))
    e("s_lshl_b32 s%d, s%d, 13" % (sTMP, sS))
    e("s_add_u32 s%d, s%d, s%d" % (sLIN, sLIN, sTMP))
    e("s_and_b32 s%d, s%d, s%d" % (sOFF, sLIN, sMASK))
    e("s_add_u32 s%d, s%d, s%d" % (sOFF, sOFF, sBASE))
    e("s_mov_b32 s%d, 0" % sSLOT)
    e("s_mov_b32 s%d, 0" % sTI)
    e("s_mov_b32 s%d, 0" % sFREE)
    e("s_waitcnt lgkmcnt(0)")
    srd(sKD, 6, "0x8000000"); srd(sVD, 8, "0x8000000")
    def issue(d):
        e("s_mov_b32 m0, s%d" % sSLOT)
        e("s_add_u32 s%d, s%d, 4096" % (sOFF2, sOFF))
        for i in range(4):
            e("buffer_load_dwordx4 v%d, s[%d:%d], s%d offen offset:%d %s lds" % (2 + (i & 1), d, d + 3, sOFF, i * 1024, pol))
        e("s_add_u32 m0, s%d, 4096" % sSLOT)
        e("s_add_u32 s%d, s%d, 8192" % (sSLOT, sSLOT))
        for i in range(4):
            e("buffer_load_dwordx4 v%d, s[%d:%d], s%d offen offset:%d %s lds" % (2 + (i & 1), d, d + 3, sOFF2, i * 1024, pol))
        e("s_and_b32 s%d, s%d, %d" % (sSLOT, sSLOT, RING - 1))
    def req():
        e("s_mov_b32 s%d, 1" % sTK); e("s_atomic_add s%d, s[%d:%d], 0x0 glc" % (sTK, sCTR, sCTR + 1))
    def advance0():
        e("s_add_u32 s%d, s%d, 1" % (sTI, sTI))
        e("s_add_u32 s%d, s%d, 0x20000" % (sLIN, sLIN))
    def advance1(static_t=None):
        if static_t is None:
            l = lab("nosw")
            if dyn:
                l2 = lab("stat"); l3 = lab("req")
                e("s_cmp_lt_u32 s%d, %d" % (sTI, NSTAT - 1)); e("s_cbranch_scc1 %s" % l2)
                e("s_cmp_lt_u32 s%d, %d" % (sTI, NSTAT)); e("s_cbranch_scc1 %s" % l3)
                e("s_waitcnt lgkmcnt(0)")
                e("s_cmp_ge_u32 s%d, %d" % (sTK, NDYN)); e("s_cbranch_scc1 L_ld_drain")
                e("s_lshl_b32 s%d, s%d, 13" % (sLIN, sTK))
                e("s_mul_i32 s%d, s%d, %d" % (sTMP, sH, phaseB * 1024))
                e("s_add_u32 s%d, s%d, s%d" % (sLIN, sLIN, sTMP))
                e("s_add_u32 s%d, s%d, %d" % (sLIN, sLIN, nstatB * 0x20000))
                e("%s:" % l3)
                req()
                e("s_branch %s" % l)
                e("%s:" % l2)
            else:
                e("s_cmp_ge_u32 s%d, %d" % (sTI, NT)); e("s_cbranch_scc1 L_ld_drain")
            e("s_cmp_lg_u32 s%d, %d" % (sTI, NT_A)); e("s_cbranch_scc1 %s" % l)
            e("s_mov_b32 s%d, s16" % sKD); e("s_mov_b32 s%d, s17" % (sKD + 1))
            e("s_mov_b32 s%d, s18" % sVD); e("s_mov_b32 s%d, s19" % (sVD + 1))
            e("s_lshl_b32 s%d, s%d, 23" % (sBASE, sH))
            e("s_mov_b32 s%d, 0x7fffff" % sMASK)
            e("s_mul_i32 s%d, s%d, %d" % (sLIN, sH, phaseB * 1024))
            e("s_lshl_b32 s%d, s%d, 13" % (sTMP, sS))
            e("s_add_u32 s%d, s%d, s%d" % (sLIN, sLIN, sTMP))
            e("%s:" % l)
        e("s_and_b32 s%d, s%d, s%d" % (sOFF, sLIN, sMASK))
        e("s_add_u32 s%d, s%d, s%d" % (sOFF, sOFF, sBASE))
    def advance(static_t=None):
        advance0(); advance1(static_t)
    for j in range(D):
        if j == P0: e("s_barrier")
        if j and j % 2 == 0: advance(static_t=j // 2)
        issue(sKD if j % 2 == 0 else sVD)
    e("s_mov_b32 s%d, 0" % sJ)
    e("s_lshl_b32 s%d, s%d, 8" % (sTMP, sH)); e("s_add_u32 s%d, s%d, %d" % (sTMP, sTMP, WS_CTR))
    e("s_add_u32 s%d, s28, s%d" % (sCTR, sTMP)); e("s_addc_u32 s%d, s29, 0" % (sCTR + 1))
    if P0 >= D: e("s_barrier")
    def publish():
        e("s_add_u32 s%d, s%d, 1" % (sJ, sJ))
        e("v_mov_b32 v4, s%d" % sJ)
        e("ds_write_b32 v%d, v4 offset:%d" % (vLB, O_LANDED))
    def step(isK):
        if isK: advance0()
        e("s_lshl_b32 s%d, s%d, 1" % (sTMP, sTI))
        e("s_add_i32 s%d, s%d, %d" % (sTMP, sTMP, (0 if isK else 1) - D + 1))
        e("v_mov_b32 v4, s%d" % sTMP)
        e("s_waitcnt vmcnt(%d)" % ((D - 1) * 8))
        e("ds_max_u32 v%d, v4 offset:%d" % (vLB, O_LANDED))
        if isK:
            if stamps:
                for idx, tt in enumerate((8, 12, 24, 48)):
                    l = lab("st"); e("s_cmp_lg_u32 s%d, %d" % (sTI, tt)); e("s_cbranch_scc1 %s" % l); stamp(3 + idx); e("%s:" % l)
            ok = lab("free"); sp = lab("fspin")
            e("s_cmp_lt_u32 s%d, s%d" % (sTI, sFREE)); e("s_cbranch_scc1 %s" % ok)
            e("%s:" % sp)
            e("ds_read_b96 v[8:10], v%d offset:%d" % (vLB, O_NEXT))
            e("s_waitcnt lgkmcnt(0)")
            e("v_min3_u32 v8, v8, v9, v10")
            e("s_nop 0")
            e("v_readfirstlane_b32 s%d, v8" % sFREE)
            e("s_add_u32 s%d, s%d, %d" % (sFREE, sFREE, NTS))
            e("s_cmp_lt_u32 s%d, s%d" % (sTI, sFREE)); e("s_cbranch_scc1 %s" % ok)
            e("s_lshl_b32 s%d, s%d, 1" % (sTMP, sTI))
            e("v_mov_b32 v4, s%d" % sTMP)
            e("s_waitcnt vmcnt(0)")
            e("ds_max_u32 v%d, v4 offset:%d" % (vLB, O_LANDED))
            bound(); e("s_sleep %d" % sleep); e("s_branch %s" % sp)
            e("%s:" % ok)
            advance1()
        issue(sKD if isK else sVD)
    e("L_ld_loop:")
    if D % 2: step(False); step(True)
    else: step(True); step(False)
    e("s_branch L_ld_loop")
    e("L_ld_drain:")
    e("v_mov_b32 v5, s%d" % sTI)
    e("ds_write_b32 v%d, v5 offset:%d" % (vLB, O_TOTAL))
    e("s_lshl_b32 s%d, s%d, 1" % (sTMP, sTI))
    for k in range(D - 1, -1, -1):
        e("s_sub_u32 s%d, s%d, %d" % (sTMP2, sTMP, k))
        e("v_mov_b32 v4, s%d" % sTMP2)
        e("s_waitcnt vmcnt(%d)" % (k * 8))
        e("ds_max_u32 v%d, v4 offset:%d" % (vLB, O_LANDED))
    if stamps: e("v_writelane_b32 v%d, s%d, 14" % (NV, sTI)); e("v_writelane_b32 v%d, 0, 15" % NV)
    stamp(1)
    e("s_cmp_ge_u32 s2, %d" % NRED)
    e("s_cbranch_scc1 L_ld_done")
    srd(sWSD, 28, WS_SIZE); srd(sOUTD, 24, 2304)
    e("s_mov_b32 s%d, 1" % sB)
    e("s_load_dword s%d, s[28:29], %d" % (sTAG, WS_NONCE))
    e("s_call_b64 s[%d:%d], L_reduce" % (sRET, sRET + 1))
    e("s_cmp_lg_u32 s2, 0"); e("s_cbranch_scc1 L_ld_done")
    e("s_waitcnt lgkmcnt(0)")
    e("s_add_u32 s%d, s%d, 0x9e3779b9" % (sTAG, sTAG))
    e("v_mov_b32 v1, s%d" % sTAG); e("v_mov_b32 v2, %d" % WS_NONCE)
    e("s_mov_b64 exec, 1"); e("buffer_store_dword v1, v2, s[%d:%d], 0 offen" % (sWSD, sWSD + 3)); e("s_mov_b64 exec, -1")
    e("L_ld_done:")
    stamp(2); stamp_flush(0)
    e("L_end:")
    e("s_endpgm")

    e("L_consumer:")
    e("s_sub_u32 s%d, s%d, 1" % (sC, sW))
    e("v_mov_b32 v%d, %d" % (vLB, LB))
    e("v_mov_b32 v2, 0"); e("v_mov_b32 v3, 0"); e("v_mov_b32 v4, 0"); e("v_mov_b32 v5, 0")
    e("v_mov_b32 v%d, 0" % vT); e("v_mov_b32 v%d, 1" % (vT + 1)); e("v_mov_b32 v%d, 2" % (vT + 2)); e("v_mov_b32 v%d, 0" % (vT + 3))
    e("ds_write_b128 v%d, v[2:5] offset:%d" % (vLB, O_CNTQ))
    e("v_mov_b32 v6, 0"); e("v_mov_b32 v7, -1")
    e("ds_write_b64 v%d, v[6:7] offset:%d" % (vLB, O_LANDED))
    assert vT % 2 == 1
    e("v_mov_b32 v8, 0"); e("v_mov_b32 v9, 1")
    e("ds_write_b64 v%d, v[8:9] offset:%d" % (vLB, O_NEXT))
    e("ds_write_b32 v%d, v%d offset:%d" % (vLB, vT + 2, O_NEXT + 8))
    rW, rX, rACC = 24, 72, 80
    e("v_lshrrev_b32 v1, 2, v%d" % vL)
    e("v_and_b32 v2, 3, v%d" % vL)
    e("v_mul_u32_u24 v3, 24, v1")
    e("v_mul_u32_u24 v4, %d, v1" % (12 * 8192))
    e("v_lshl_add_u32 v4, v2, 4, v4")
    e("s_lshr_b32 s%d, s%d, 3" % (sST, sS))
    e("s_mul_i32 s%d, s%d, 192" % (sST + 1, sC))
    e("s_lshl_b32 s%d, s%d, 1" % (sST + 2, sST + 1))
    e("s_lshl_b32 s%d, s%d, 13" % (sST + 3, sST + 1))
    e("s_lshl_b32 s%d, s%d, 9" % (sST + 4, sH))
    e("s_and_b32 s%d, s%d, 3" % (sST + 5, sS))
    e("s_lshl_b32 s%d, s%d, 7" % (sST + 5, sST + 5))
    e("s_add_u32 s%d, s%d, s%d" % (sST + 3, sST + 3, sST + 4))
    e("s_add_u32 s%d, s%d, s%d" % (sST + 3, sST + 3, sST + 5))
    e("s_lshl_b32 s%d, s%d, 6" % (sST + 5, sST))
    e("s_add_u32 s%d, s%d, s%d" % (sST + 3, sST + 3, sST + 5))
    e("v_cmp_le_u32 vcc, 24, v%d" % vL)
    e("v_lshlrev_b32 v5, 4, v%d" % vL)
    e("v_add_u32 v6, %d, v5" % (256 * 1152 - 384))
    e("v_cndmask_b32 v5, v5, v6, vcc")
    for i in range(4): e("v_mov_b32 v%d, -1" % (vT + 1 + i))
    e("s_mul_i32 s%d, s%d, 384" % (sST + 4, sC))
    e("s_mul_i32 s%d, s2, 1152" % (sST + 5))
    e("s_add_u32 s%d, s%d, s%d" % (sST + 5, sST + 5, sST + 4))
    e("s_add_u32 s%d, s%d, %d" % (sST + 5, sST + 5, WS_H1))
    e("s_lshl_b32 s%d, s%d, 7" % (sST + 6, sST))
    e("s_lshl_b32 s%d, s%d, 3" % (sST + 7, sH))
    e("s_add_u32 s%d, s%d, s%d" % (sST + 6, sST + 6, sST + 7))
    e("s_and_b32 s%d, s%d, 7" % (sST + 7, sS))
    e("s_add_u32 s%d, s%d, s%d" % (sST + 6, sST + 6, sST + 7))
    e("s_mul_i32 s%d, s%d, 1152" % (sH2, sST + 6))
    e("s_add_u32 s%d, s%d, %d" % (sH2, sH2, WS_H2))
    e("s_add_u32 s%d, s%d, s%d" % (sST + 6, sH2, sST + 4))
    e("s_bitcmp1_b32 s%d, 2" % sS)
    e("s_waitcnt lgkmcnt(0)")
    e("s_load_dword s%d, s[28:29], %d" % (sTAG, WS_NONCE))
    e("s_cselect_b32 s%d, s14, s4" % sXD); e("s_cselect_b32 s%d, s15, s5" % (sXD + 1))
    e("s_cselect_b32 s%d, s20, s10" % sQD); e("s_cselect_b32 s%d, s21, s11" % (sQD + 1))
    e("s_mov_b32 s%d, 1152" % (sXD + 2)); e("s_mov_b32 s%d, 0x20000" % (sXD + 3))
    e("s_mov_b32 s%d, 4718592" % (sQD + 2)); e("s_mov_b32 s%d, 0x20000" % (sQD + 3))
    srd(sWSD, 28, WS_SIZE)
    def clears():
        e("s_mov_b32 exec_hi, 0xffff")
        e("buffer_store_dwordx4 %s, v5, s[%d:%d], s%d offen sc1" % (vr(vT + 1, 4), sWSD, sWSD + 3, sST + 5))
        e("buffer_store_dwordx4 %s, v5, s[%d:%d], s%d offen sc1" % (vr(vT + 1, 4), sWSD, sWSD + 3, sST + 6))
        e("s_mov_b64 exec, -1")
        if dyn:
            l = lab("noz")
            e("s_or_b32 s%d, s%d, s%d" % (sST + 7, sS, sC)); e("s_cbranch_scc1 %s" % l)
            e("s_lshl_b32 s%d, s%d, 8" % (sST + 7, sH)); e("s_add_u32 s%d, s%d, %d" % (sST + 7, sST + 7, WS_CTR))
            e("v_mov_b32 v6, 0")
            e("s_mov_b64 exec, 1"); e("buffer_store_dword v6, v6, s[%d:%d], s%d offen sc1" % (sWSD, sWSD + 3, sST + 7)); e("s_mov_b64 exec, -1")
            e("%s:" % l)
    if clearfirst: clears()
    for i in range(3):
        e("buffer_load_dwordx2 %s, v3, s[%d:%d], s%d offen offset:%d" % (vr(rX + 2 * i, 2), sXD, sXD + 3, sST + 2, 8 * i))
    for i in range(12):
        e("buffer_load_dwordx4 %s, v4, s[%d:%d], s%d offen %s" % (vr(rW + 4 * i, 4), sQD, sQD + 3, sST + 3, wqpol))
        if i < 11: e("s_add_u32 s%d, s%d, 8192" % (sST + 3, sST + 3))
    if not clearfirst: clears()
    srd(sOUTD, 24, 2304)
    assert clearfirst
    if barw < 12: e("s_waitcnt vmcnt(%d)" % barw)
    e("s_barrier")
    e("s_mov_b32 s%d, 0xcccccccc" % sM1); e("s_mov_b32 s%d, 0xcccccccc" % (sM1 + 1))
    e("s_mov_b32 s%d, 0xf0f0f0f0" % sM2); e("s_mov_b32 s%d, 0xf0f0f0f0" % (sM2 + 1))
    e("s_mov_b32 s%d, 0xff00ff00" % sM3); e("s_mov_b32 s%d, 0xff00ff00" % (sM3 + 1))
    e("s_mov_b32 s%d, 0xffff0000" % sMG); e("s_mov_b32 s%d, 0xffff0000" % (sMG + 1))
    e("s_mov_b32 s%d, %#x" % (sLOG2E, LOG2E)); e("s_mov_b32 s%d, %#x" % (sSCALE, SCALE))
    e("s_mov_b32 s%d, 0x05040100" % sPLO); e("s_mov_b32 s%d, 0x07060302" % sPHI)
    e("v_and_b32 v5, 15, v%d" % vL)
    e("v_lshrrev_b32 v6, 4, v%d" % vL)
    e("v_and_b32 v7, 7, v5"); e("v_lshlrev_b32 v7, 1, v7"); e("v_xor_b32 v7, v7, v6")
    e("v_lshlrev_b32 v7, 4, v7"); e("v_lshl_add_u32 v%d, v5, 8, v7" % vAK0)
    e("v_lshrrev_b32 v7, 2, v5"); e("v_lshl_add_u32 v7, v6, 2, v7")
    e("v_and_b32 v%d, 7, v7" % vT); e("v_lshlrev_b32 v%d, 5, v%d" % (vT, vT)); e("v_lshl_add_u32 v7, v7, 8, v%d" % vT)
    e("v_and_b32 v%d, 3, v5" % vT); e("v_lshl_add_u32 v7, v%d, 3, v7" % vT); e("v_add_u32 v%d, 0x2000, v7" % vAV0)
    e("v_mov_b32 v7, 0xffff"); e("v_mov_b32 v%d, 0xffff0000" % vT)
    e("v_cndmask_b32 v7, v7, v%d, s[%d:%d]" % (vT, sM1, sM1 + 1))
    e("v_lshrrev_b32 v%d, 2, v5" % vT)
    for p in range(4):
        e("v_cmp_eq_u32 vcc, %d, v%d" % (p, vT)); e("s_nop 1"); e("v_cndmask_b32 v%d, 0, v7, vcc" % (vPM + p))
    e("v_mul_u32_u24 v%d, 1152, v5" % vAH1L)
    e("v_lshl_add_u32 v%d, v6, 5, v%d" % (vAH1, vAH1L))
    e("s_lshl_b32 s%d, s%d, 4" % (sCST, sC))
    e("s_cmp_eq_u32 s%d, 2" % sC); e("s_cselect_b32 s%d, 4, 16" % sCCNT)
    e("s_cmp_eq_u32 s%d, 0" % sST); e("s_cbranch_scc1 L_sc0")
    e("s_sub_u32 s%d, s%d, 12" % (sCST, sCST))
    e("s_cmp_eq_u32 s%d, 0" % sC); e("s_cselect_b32 s%d, 4, 16" % sCCNT); e("s_cselect_b32 s%d, 0, s%d" % (sCST, sCST))
    e("L_sc0:")
    e("s_sub_u32 s%d, s%d, 1" % (sST + 8, sCCNT))
    e("v_min_u32 v7, s%d, v5" % (sST + 8))
    e("v_mul_u32_u24 v%d, %d, v6" % (vT, 8 * 1152))
    e("v_lshl_add_u32 v%d, v7, 4, v%d" % (vAWO, vT))
    e("v_lshlrev_b32 v7, 5, v5"); e("v_lshl_add_u32 v%d, v6, 4, v7" % vAH2)
    e("s_mul_i32 s%d, s%d, 1056" % (sST + 8, sC)); e("s_add_u32 s%d, s%d, %d" % (sST + 8, sST + 8, LB + O_SCR))
    e("v_lshrrev_b32 v7, 5, v%d" % vL); e("v_lshlrev_b32 v7, 9, v7")
    e("v_and_b32 v%d, 31, v%d" % (vT, vL)); e("v_lshl_add_u32 v7, v%d, 2, v7" % vT); e("v_add_u32 v%d, s%d, v7" % (vAMD, sST + 8))
    e("v_and_b32 v7, 1, v%d" % vL); e("v_lshlrev_b32 v7, 3, v7"); e("v_add_u32 v%d, s%d, v7" % (vAML, sST + 8))
    for a in range(8): e("v_mov_b32 v%d, 0" % (rACC + a))
    for pr in range(6):
        e("s_waitcnt vmcnt(%d)" % ((0 if clearfirst else 2) + 10 - 2 * pr))
        for d in range(4):
            lo, hi = rW + 8 * pr + d, rW + 8 * pr + 4 + d
            e("v_perm_b32 v%d, v%d, v%d, s%d" % (vT + 2 * d, hi, lo, sPLO))
            e("v_perm_b32 v%d, v%d, v%d, s%d" % (vT + 2 * d + 1, hi, lo, sPHI))
        for a in range(8):
            e("v_dot2_f32_bf16 v%d, v%d, v%d, v%d" % (rACC + a, vT + a, rX + pr, rACC + a))
    e("s_lshl_b32 s%d, s%d, 11" % (sST + 8, sC)); e("s_add_u32 s%d, s%d, %d" % (sST + 8, sST + 8, LB + O_SCR))
    e("v_lshl_add_u32 v7, v%d, 5, s%d" % (vL, sST + 8))
    e("s_nop 0")
    e("ds_write_b128 v7, %s" % vr(rACC, 4)); e("ds_write_b128 v7, %s offset:16" % vr(rACC + 4, 4))
    e("v_mov_b32 v1, 1")
    e("s_waitcnt vmcnt(0) lgkmcnt(0)")
    e("s_mov_b64 exec, 1"); e("ds_add_rtn_u32 v2, v%d, v1 offset:%d" % (vLB, O_CNTQ)); e("s_mov_b64 exec, -1")
    e("s_waitcnt lgkmcnt(0)")
    e("v_readfirstlane_b32 s%d, v2" % (sST + 8))
    e("s_cmp_lg_u32 s%d, 2" % (sST + 8)); e("s_cbranch_scc1 L_qwait")
    e("v_lshrrev_b32 v6, 4, v%d" % vL); e("v_mul_u32_u24 v6, %d, v6" % (12 * 128))
    e("v_and_b32 v5, 15, v%d" % vL); e("v_lshlrev_b32 v5, 3, v5")
    e("v_add3_u32 v7, v5, v6, v%d" % vLB)
    for r in range(12): e("ds_read_b64 %s, v7 offset:%d" % (vr(rW + 2 * r, 2), O_SCR + r * 128))
    e("s_and_b32 s%d, s%d, 7" % (sST + 9, sS)); e("s_lshl_b32 s%d, s%d, 1" % (sST + 9, sST + 9)); e("s_add_u32 s%d, s%d, s%d" % (sST + 9, sST + 9, sST))
    e("s_lshl_b32 s%d, s%d, 7" % (sST + 9, sST + 9))
    e("s_lshl_b32 s%d, s%d, 11" % (sST + 8, sH))
    e("s_add_u32 s%d, s%d, s%d" % (sST + 9, sST + 8, sST + 9))
    e("s_add_u32 s%d, s%d, 0x9e3779b9" % (sTAG, sTAG))
    e("s_waitcnt lgkmcnt(0)")
    n = 12
    while n > 1:
        h2 = n // 2
        for r in range(h2): e("v_pk_add_f32 %s, %s, %s" % (vr(rW + 2 * r, 2), vr(rW + 2 * r, 2), vr(rW + 2 * (n - h2 + r), 2)))
        n -= h2
    for sw in ("16", "32"):
        e("v_mov_b32 v%d, v%d" % (rW + 2, rW)); e("v_mov_b32 v%d, v%d" % (rW + 3, rW + 1)); e("s_nop 0")
        e("v_permlane%s_swap_b32 v%d, v%d" % (sw, rW, rW + 2)); e("v_permlane%s_swap_b32 v%d, v%d" % (sw, rW + 1, rW + 3))
        e("v_pk_add_f32 %s, %s, %s" % (vr(rW, 2), vr(rW, 2), vr(rW + 2, 2)))
    e("v_cvt_pk_bf16_f32 v%d, v%d, v%d" % (rW, rW, rW + 1))
    e("v_mov_b32 v%d, s%d" % (rW + 1, sTAG))
    e("v_mov_b32 v2, s2")
    e("s_mov_b64 exec, 0xffff")
    e("buffer_store_dwordx2 %s, v5, s[%d:%d], s%d offen sc1" % (vr(rW, 2), sWSD, sWSD + 3, sST + 9))
    e("s_mov_b64 exec, 1"); e("global_store_byte v2, v1, s[26:27] sc1"); e("s_mov_b64 exec, -1")
    stamp(1)
    e("v_lshlrev_b32 v7, 4, v%d" % vL)
    e("L_qspin:")
    for j in range(2):
        e("buffer_load_dwordx4 %s, v7, s[%d:%d], s%d offen offset:%d sc1" % (vr(rW + 4 * j, 4), sWSD, sWSD + 3, sST + 8, j * 1024))
    e("s_waitcnt vmcnt(0)")
    e("v_xor_b32 v%d, s%d, v%d" % (rW + 1, sTAG, rW + 1)); e("v_xor_b32 v%d, s%d, v%d" % (rW + 3, sTAG, rW + 3))
    e("v_xor_b32 v%d, s%d, v%d" % (rW + 5, sTAG, rW + 5)); e("v_xor_b32 v%d, s%d, v%d" % (rW + 7, sTAG, rW + 7))
    e("v_or3_b32 v4, v%d, v%d, v%d" % (rW + 1, rW + 3, rW + 5)); e("v_or_b32 v4, v4, v%d" % (rW + 7))
    e("v_cmp_ne_u32 vcc, 0, v4")
    e("s_cbranch_vccz L_qready")
    bound(); e("s_sleep %d" % sleep); e("s_branch L_qspin")
    e("L_qready:")
    e("v_lshl_add_u32 v7, v%d, 3, v%d" % (vL, vLB))
    e("v_mov_b32 v%d, v%d" % (rW + 1, rW + 2)); e("v_mov_b32 v%d, v%d" % (rW + 5, rW + 6))
    e("ds_write_b64 v7, %s offset:%d" % (vr(rW, 2), O_QB)); e("ds_write_b64 v7, %s offset:%d" % (vr(rW + 4, 2), O_QB + 512))
    e("s_waitcnt lgkmcnt(0)")
    e("ds_write_b32 v%d, v1 offset:%d" % (vLB, O_QRDY))
    e("s_branch L_qgo")
    e("L_qwait:")
    e("ds_read_b32 v4, v%d offset:%d" % (vLB, O_QRDY))
    e("s_waitcnt lgkmcnt(0)")
    e("v_readfirstlane_b32 s%d, v4" % (sST + 8))
    e("s_cmp_lg_u32 s%d, 0" % (sST + 8)); e("s_cbranch_scc1 L_qgo")
    bound(); e("s_sleep %d" % sleep); e("s_branch L_qwait")
    e("L_qgo:")
    e("v_and_b32 v5, 1, v%d" % vL); e("v_lshlrev_b32 v5, 8, v5"); e("v_lshrrev_b32 v6, 4, v%d" % vL)
    e("v_lshl_add_u32 v5, v6, 4, v5"); e("v_add_u32 v%d, v5, v%d" % (vX, vLB))
    stamp(2)
    def wo_srd(p):
        srd(sOD, p, 4718592)
    e("s_lshl_b32 s%d, s%d, 3" % (sST + 8, sH)); e("s_and_b32 s%d, s%d, 7" % (sST + 9, sS)); e("s_add_u32 s%d, s%d, s%d" % (sST + 8, sST + 8, sST + 9))
    e("s_mul_i32 s%d, s%d, %d" % (sST + 8, sST + 8, 32 * 1152))
    e("s_mul_i32 s%d, s%d, 576" % (sST + 9, sST)); e("s_add_u32 s%d, s%d, s%d" % (sST + 8, sST + 8, sST + 9))
    e("s_lshl_b32 s%d, s%d, 4" % (sST + 9, sCST)); e("s_add_u32 s%d, s%d, s%d" % (sWO, sST + 8, sST + 9))
    def call(l): e("s_call_b64 s[%d:%d], %s" % (sRET, sRET + 1, l))
    e("s_mov_b32 s%d, s%d" % (sT, sC)); e("s_mov_b32 s%d, 0" % sLAND)
    e("s_mov_b32 s%d, 0" % sB)
    wo_srd(12); call("L_woload")
    call("L_begin")
    e("s_mov_b32 s%d, %d" % (sEND, NT_A)); call("L_tiles")
    stamp(3)
    call("L_merge")
    e("s_mov_b32 s%d, 1" % sB)
    call("L_begin")
    e("s_mov_b32 s%d, %d" % (sEND, T1)); call("L_tiles")
    call("L_woperm")
    e("s_mov_b32 s%d, 0" % sB)
    call("L_hop1")
    wo_srd(22); call("L_woload")
    e("s_mov_b32 s%d, %d" % (sEND, T2)); call("L_tiles")
    call("L_woperm")
    e("s_cmp_ge_u32 s2, %d" % NRED); e("s_cbranch_scc1 L_nored")
    e("s_cmp_lg_u32 s%d, 0" % sC); e("s_cbranch_scc1 L_nored")
    call("L_reduce")
    e("L_nored:")
    e("s_mov_b32 s%d, 1" % sB)
    e("s_mov_b32 s%d, 0x7fffffff" % sEND); call("L_tiles")
    stamp(4)
    call("L_merge")
    stamp(5)
    call("L_hop1")
    stamp(6); stamp_flush(1)
    e("s_endpgm")
    ret = lambda: e("s_setpc_b64 s[%d:%d]" % (sRET, sRET + 1))

    e("L_begin:")
    e("s_lshl_b32 s%d, s%d, 9" % (sST + 8, sB))
    e("v_add_u32 v1, s%d, v%d" % (sST + 8, vX))
    e("s_waitcnt lgkmcnt(0)")
    for k in range(4): e("ds_read_b128 %s, v1 offset:%d" % (vr(vQ + 4 * k, 4), O_QB + k * 64))
    e("v_mov_b32 v%d, 0xff61b1e6" % vM)
    e("v_mov_b32 v%d, 0" % vMC); e("v_mov_b32 v%d, 0" % vLS)
    for i in range(32): e("v_mov_b32 v%d, 0" % (vO + i))
    e("s_waitcnt lgkmcnt(0)")
    ret()

    e("L_woload:")
    e("s_add_u32 s%d, s%d, %d" % (sST + 8, sWO, 4 * 1152))
    for i in range(8):
        e("buffer_load_dwordx4 %s, v%d, s[%d:%d], s%d offen offset:%d %s" % (vr(vWR + 4 * i, 4), vAWO, sOD, sOD + 3, sWO if i < 4 else sST + 8, (i % 4) * 1152, pol))
    ret()
    e("L_woperm:")
    e("s_waitcnt vmcnt(0)")
    for ee in range(8):
        for p in range(4):
            e("v_perm_b32 v%d, v%d, v%d, s%d" % (vW + 4 * ee + p, vWR + 4 * (2 * p + 1) + ee // 2, vWR + 4 * (2 * p) + ee // 2, sPHI if ee & 1 else sPLO))
    ret()

    def wait_landed(name):
        ok = lab(name + "ok"); sp = lab(name + "sp")
        e("s_cmp_ge_u32 s%d, s%d" % (sLAND, sNEED)); e("s_cbranch_scc1 %s" % ok)
        e("%s:" % sp)
        if name == "k":
            e("ds_read_b64 v[2:3], v%d offset:%d" % (vLB, O_LANDED))
        else:
            e("ds_read_b32 v2, v%d offset:%d" % (vLB, O_LANDED))
        e("s_waitcnt lgkmcnt(0)")
        e("v_readfirstlane_b32 s%d, v2" % sLAND)
        if name == "k": e("v_readfirstlane_b32 s%d, v3" % (sST + 9))
        e("s_cmp_ge_u32 s%d, s%d" % (sLAND, sNEED)); e("s_cbranch_scc1 %s" % ok)
        if name == "k":
            e("s_cmp_ge_u32 s%d, s%d" % (sT, sST + 9)); e("s_cbranch_scc1 L_tiles_ret")
        bound(); e("s_sleep %d" % csleep); e("s_branch %s" % sp)
        e("%s:" % ok)
    e("L_tiles:")
    e("s_cmp_ge_u32 s%d, s%d" % (sT, sEND)); e("s_cbranch_scc1 L_tiles_ret")
    e("L_tile:")
    e("s_and_b32 s%d, s%d, %d" % (sST + 8, sT, NTS - 1)); e("s_lshl_b32 s%d, s%d, 14" % (sST + 8, sST + 8))
    e("s_lshl_b32 s%d, s%d, 1" % (sNEED, sT)); e("s_add_u32 s%d, s%d, 1" % (sNEED, sNEED))
    e("v_add_u32 v%d, s%d, v%d" % (vAK, sST + 8, vAK0))
    e("v_add_u32 v%d, s%d, v%d" % (vAV, sST + 8, vAV0))
    for k in range(1, 4): e("v_xor_b32 v%d, %d, v%d" % (vAK + k, k << 6, vAK))
    for cg in range(1, 8): e("v_xor_b32 v%d, %d, v%d" % (vAV + cg, cg << 5, vAV))
    wait_landed("k")
    for k in range(4):
        for blk in range(2):
            if not nocomp: e("ds_read_b128 %s, v%d offset:%d" % (vr(vK + 16 * blk + 4 * k, 4), vAK + k, blk * 4096))
    e("s_add_u32 s%d, s%d, 1" % (sNEED, sNEED))
    for k in range(4):
        e("s_waitcnt lgkmcnt(%d)" % (6 - 2 * k))
        for blk in range(2):
            e("v_mfma_f32_16x16x32_bf16 %s, %s, %s, %s" % (vr(vS + 4 * blk, 4), vr(vK + 16 * blk + 4 * k, 4), vr(vQ + 4 * k, 4), "0" if k == 0 else vr(vS + 4 * blk, 4)))
    e("s_nop 6")
    t = vT
    e("v_cndmask_b32 v%d, v%d, v%d, s[%d:%d]" % (t, vS, vS + 1, sM1, sM1 + 1))
    e("v_cndmask_b32 v%d, v%d, v%d, s[%d:%d]" % (t + 1, vS + 2, vS + 3, sM1, sM1 + 1))
    e("v_cndmask_b32 v%d, v%d, v%d, s[%d:%d]" % (t + 2, vS + 4, vS + 5, sM1, sM1 + 1))
    e("v_cndmask_b32 v%d, v%d, v%d, s[%d:%d]" % (t + 3, vS + 6, vS + 7, sM1, sM1 + 1))
    e("v_cndmask_b32 v%d, v%d, v%d, s[%d:%d]" % (t, t, t + 1, sM2, sM2 + 1))
    e("v_cndmask_b32 v%d, v%d, v%d, s[%d:%d]" % (t + 2, t + 2, t + 3, sM2, sM2 + 1))
    e("v_cndmask_b32 v%d, v%d, v%d, s[%d:%d]" % (t, t, t + 2, sM3, sM3 + 1))
    e("v_cvt_pk_bf16_f32 v%d, v%d, v%d" % (t, t, t))
    e("v_and_b32 v%d, 0xffff0000, v%d" % (t, t))
    e("v_mul_f32 v%d, s%d, v%d" % (t, sSCALE, t))
    e("v_cvt_pk_bf16_f32 v%d, v%d, v%d" % (t, t, t))
    e("v_and_b32 v%d, 0xffff0000, v%d" % (t, t))
    e("v_cmp_gt_f32 vcc, v%d, v%d" % (t, vM))
    e("s_cbranch_vccnz L_newmax")
    e("L_maxok:")
    e("v_fma_f32 v%d, v%d, s%d, v%d" % (t, t, sLOG2E, vMC))
    e("v_exp_f32 v%d, v%d" % (t, t))
    wait_landed("v")
    for cg in range(8):
        for blk in range(2):
            if not nocomp: e("ds_read_b64_tr_b16 %s, v%d offset:%d" % (vr(vV + 4 * cg + 2 * blk, 2), vAV + cg, blk * 4096))
    e("v_add_f32 v%d, v%d, v%d" % (vLS, vLS, t))
    e("v_cvt_pk_bf16_f32 v%d, v%d, v%d" % (t, t, t))
    for p in range(4): e("v_and_b32 v%d, v%d, v%d" % (vP + p, t, vPM + p))
    e("s_add_u32 s%d, s%d, 3" % (sT, sT))
    e("v_mov_b32 v2, s%d" % sT)
    e("s_lshl_b32 s%d, s%d, 2" % (sST + 8, sC))
    e("v_add_u32 v3, s%d, v%d" % (sST + 8, vLB))
    for cg in range(8):
        e("s_waitcnt lgkmcnt(%d)" % (14 - 2 * cg))
        if cg == 7: e("ds_write_b32 v3, v2 offset:%d" % O_NEXT)
        e("v_mfma_f32_16x16x32_bf16 %s, %s, %s, %s" % (vr(vO + 4 * cg, 4), vr(vP, 4), vr(vV + 4 * cg, 4), vr(vO + 4 * cg, 4)))
    e("s_cmp_lt_u32 s%d, s%d" % (sT, sEND)); e("s_cbranch_scc1 L_tile")
    e("L_tiles_ret:")
    ret()
    e("L_newmax:")
    e("v_max_f32 v%d, v%d, v%d" % (t + 1, t, vM))
    for r in (2, 4, 8):
        e("s_nop 1"); e("v_max_f32_dpp v%d, v%d, v%d row_ror:%d row_mask:0xf bank_mask:0xf" % (t + 1, t + 1, t + 1, r))
    for sw in ("16", "32"):
        e("v_mov_b32 v%d, v%d" % (t + 2, t + 1)); e("s_nop 1")
        e("v_permlane%s_swap_b32 v%d, v%d" % (sw, t + 1, t + 2)); e("v_max_f32 v%d, v%d, v%d" % (t + 1, t + 1, t + 2))
    e("v_sub_f32 v%d, v%d, v%d" % (t + 2, vM, t + 1))
    e("v_mul_f32 v%d, s%d, v%d" % (t + 2, sLOG2E, t + 2))
    e("v_exp_f32 v%d, v%d" % (t + 2, t + 2))
    e("v_mov_b32 v%d, v%d" % (vM, t + 1))
    e("v_mul_f32 v%d, s%d, v%d" % (vMC, sLOG2E, t + 1))
    e("v_readlane_b32 s%d, v%d, 0" % (sAL, t + 2)); e("v_readlane_b32 s%d, v%d, 1" % (sAL + 1, t + 2))
    e("v_sub_f32 v%d, 0, v%d" % (vMC, vMC))
    e("v_mul_f32 v%d, v%d, v%d" % (vLS, vLS, t + 2))
    for i in range(16): e("v_pk_mul_f32 %s, %s, s[%d:%d]" % (vr(vO + 2 * i, 2), vr(vO + 2 * i, 2), sAL, sAL + 1))
    e("s_branch L_maxok")

    e("L_merge:")
    e("s_mul_i32 s%d, s%d, %d" % (sST + 8, sB, 3 * 1056))
    e("v_add_u32 v4, s%d, v%d" % (sST + 8, vAMD)); e("v_add_u32 v5, s%d, v%d" % (sST + 8, vAML))
    e("v_mov_b32 v7, v%d" % vLS); e("v_mov_b32 v6, v%d" % vM)
    for r in (2, 4, 8):
        e("s_nop 1"); e("v_add_f32_dpp v7, v7, v7 row_ror:%d row_mask:0xf bank_mask:0xf" % r)
    for sw in ("16", "32"):
        e("v_mov_b32 v1, v7"); e("s_nop 1"); e("v_permlane%s_swap_b32 v7, v1" % sw); e("v_add_f32 v7, v7, v1")
    e("ds_write_b64 v5, v[6:7] offset:1024")
    for cg in range(8): e("v_pk_add_f32 %s, %s, %s" % (vr(vO + 4 * cg, 2), vr(vO + 4 * cg, 2), vr(vO + 4 * cg + 2, 2)))
    for cg in range(8): e("v_permlane32_swap_b32 v%d, v%d" % (vO + 4 * cg, vO + 4 * cg + 1))
    for cg in range(8): e("v_add_f32 v%d, v%d, v%d" % (vO + 4 * cg, vO + 4 * cg, vO + 4 * cg + 1))
    for c2 in range(4): e("v_permlane16_swap_b32 v%d, v%d" % (vO + 8 * c2, vO + 8 * c2 + 4))
    for c2 in range(4):
        e("v_add_f32 v%d, v%d, v%d" % (vO + 8 * c2, vO + 8 * c2, vO + 8 * c2 + 4))
        e("ds_write_b32 v4, v%d offset:%d" % (vO + 8 * c2, c2 * 128))
    e("s_lshl_b32 s%d, s%d, 2" % (sST + 9, sB)); e("v_add_u32 v3, s%d, v%d" % (sST + 9, vLB)); e("v_mov_b32 v1, 1")
    e("s_waitcnt lgkmcnt(0)")
    e("s_mov_b64 exec, 1"); e("ds_add_rtn_u32 v2, v3, v1 offset:%d" % O_CNTM); e("s_mov_b64 exec, -1")
    e("s_add_u32 s%d, s%d, %d" % (sST + 8, sST + 8, LB + O_SCR))
    e("v_lshl_add_u32 v4, v%d, 4, s%d" % (vL, sST + 8))
    e("v_lshrrev_b32 v5, 5, v%d" % vL); e("v_lshl_add_u32 v5, v5, 3, s%d" % (sST + 8))
    e("s_waitcnt lgkmcnt(0)")
    e("v_readfirstlane_b32 s%d, v2" % (sST + 9))
    e("s_cmp_lg_u32 s%d, 2" % (sST + 9)); e("s_cbranch_scc1 L_merge_ret")
    a = vK
    for c in range(3): e("ds_read_b64 %s, v5 offset:%d" % (vr(a + 2 * c, 2), c * 1056 + 1024))
    for c in range(3): e("ds_read_b128 %s, v4 offset:%d" % (vr(a + 8 + 4 * c, 4), c * 1056))
    e("s_lshl_b32 s%d, s%d, 8" % (sST + 9, sB)); e("s_add_u32 s%d, s%d, s2" % (sST + 9, sST + 9))
    e("s_mul_i32 s%d, s%d, 1152" % (sST + 9, sST + 9)); e("s_add_u32 s%d, s%d, %d" % (sST + 9, sST + 9, WS_H1))
    e("s_waitcnt lgkmcnt(3)")
    e("v_max3_f32 v6, v%d, v%d, v%d" % (a, a + 2, a + 4))
    for c in range(3): e("v_sub_f32 v%d, v%d, v6" % (a + 2 * c, a + 2 * c))
    for c in range(3): e("v_mul_f32 v%d, s%d, v%d" % (a + 2 * c, sLOG2E, a + 2 * c))
    for c in range(3): e("v_exp_f32 v%d, v%d" % (a + 2 * c, a + 2 * c))
    e("v_lshlrev_b32 v4, 4, v%d" % vL)
    e("v_mul_f32 v7, v%d, v%d" % (a, a + 1))
    e("v_fmac_f32 v7, v%d, v%d" % (a + 2, a + 3)); e("v_fmac_f32 v7, v%d, v%d" % (a + 4, a + 5))
    e("v_rcp_f32 v1, v7"); e("v_log_f32 v7, v7")
    e("v_lshrrev_b32 v5, 5, v%d" % vL)
    for c in range(3): e("v_mul_f32 v%d, v%d, v1" % (a + 2 * c, a + 2 * c))
    e("v_fmac_f32 v7, s%d, v6" % sLOG2E)
    e("v_lshlrev_b32 v5, 2, v5")
    e("s_waitcnt lgkmcnt(0)")
    for d in range(4): e("v_mul_f32 v%d, v%d, v%d" % (a + 8 + d, a + 8 + d, a))
    for d in range(4): e("v_fmac_f32 v%d, v%d, v%d" % (a + 8 + d, a + 12 + d, a + 2))
    for d in range(4): e("v_fmac_f32 v%d, v%d, v%d" % (a + 8 + d, a + 16 + d, a + 4))
    e("buffer_store_dwordx4 %s, v4, s[%d:%d], s%d offen sc1" % (vr(a + 8, 4), sWSD, sWSD + 3, sST + 9))
    e("s_mov_b32 exec_lo, 1"); e("s_mov_b32 exec_hi, 1")
    e("buffer_store_dword v7, v5, s[%d:%d], s%d offen offset:1024 sc1" % (sWSD, sWSD + 3, sST + 9))
    e("s_mov_b64 exec, -1")
    e("L_merge_ret:")
    ret()

    e("L_hop1:")
    e("s_lshl_b32 s%d, s%d, 4" % (sST + 8, sB)); e("s_add_u32 s%d, s%d, s%d" % (sST + 8, sST + 8, sH))
    e("s_mul_i32 s%d, s%d, %d" % (sST + 8, sST + 8, 16 * 1152)); e("s_add_u32 s%d, s%d, %d" % (sST + 8, sST + 8, WS_H1))
    e("s_bfe_u32 s%d, s%d, 0x10002" % (sST + 9, sS)); e("s_lshl_b32 s%d, s%d, 2" % (sST + 9, sST + 9))
    e("s_add_u32 s%d, s%d, s%d" % (sST + 9, sST + 9, sST + 8))
    e("s_and_b32 s%d, s%d, 7" % (sST + 10, sS)); e("s_lshl_b32 s%d, s%d, 7" % (sST + 10, sST + 10))
    e("s_add_u32 s%d, s%d, s%d" % (sST + 8, sST + 8, sST + 10))
    a = vK
    e("L_h1spin:")
    e("buffer_load_dwordx4 %s, v%d, s[%d:%d], s%d offen sc1" % (vr(a, 4), vAH1, sWSD, sWSD + 3, sST + 8))
    e("buffer_load_dwordx4 %s, v%d, s[%d:%d], s%d offen offset:16 sc1" % (vr(a + 4, 4), vAH1, sWSD, sWSD + 3, sST + 8))
    e("buffer_load_dword v%d, v%d, s[%d:%d], s%d offen offset:1024 sc1" % (a + 8, vAH1L, sWSD, sWSD + 3, sST + 9))
    e("s_waitcnt vmcnt(0)")
    e("v_max3_u32 v1, v%d, v%d, v%d" % (a, a + 1, a + 2))
    for i in range(3): e("v_max3_u32 v1, v1, v%d, v%d" % (a + 3 + 2 * i, a + 4 + 2 * i))
    e("v_cmp_eq_u32 vcc, -1, v1")
    e("s_cbranch_vccz L_h1ok")
    bound(); e("s_sleep %d" % sleep); e("s_branch L_h1spin")
    e("L_h1ok:")
    e("v_mov_b32 v1, v%d" % (a + 8))
    for r in (8, 4, 2, 1):
        e("s_nop 1"); e("v_max_f32_dpp v1, v1, v1 row_ror:%d row_mask:0xf bank_mask:0xf" % r)
    e("v_sub_f32 v1, v%d, v1" % (a + 8)); e("v_exp_f32 v1, v1"); e("s_nop 0"); e("v_mov_b32 v2, v1")
    for i in range(8): e("v_mul_f32 v%d, v%d, v1" % (a + i, a + i))
    for r in (8, 4, 2, 1):
        e("v_add_f32_dpp v2, v2, v2 row_ror:%d row_mask:0xf bank_mask:0xf" % r)
        for i in range(8): e("v_add_f32_dpp v%d, v%d, v%d row_ror:%d row_mask:0xf bank_mask:0xf" % (a + i, a + i, a + i, r))
    e("v_rcp_f32 v2, v2")
    e("s_mul_i32 s%d, s%d, %d" % (sST + 8, sB, 256 * 1152)); e("s_add_u32 s%d, s%d, s%d" % (sST + 8, sST + 8, sH2))
    e("s_lshl_b32 s%d, s%d, 5" % (sST + 9, sCST)); e("s_add_u32 s%d, s%d, s%d" % (sST + 8, sST + 8, sST + 9))
    for i in range(8): e("v_mul_f32 v%d, v%d, v2" % (a + i, a + i))
    for p in range(4): e("v_cvt_pk_bf16_f32 v%d, v%d, v%d" % (a + 12 + p, a + 2 * p, a + 2 * p + 1))
    e("s_bfm_b32 s%d, s%d, 0" % (sST + 9, sCCNT)); e("s_mul_i32 s%d, s%d, 0x10001" % (sST + 9, sST + 9))
    for ee in range(8):
        e("v_mfma_f32_16x16x32_bf16 %s, %s, %s, 0" % (vr(vV + 4 * ee, 4), vr(a + 12, 4), vr(vW + 4 * ee, 4)))
    e("s_nop 4")
    for r in range(4): e("v_cndmask_b32 v%d, v%d, v%d, s[%d:%d]" % (a + 16 + r, vV + 4 * r, vV + 16 + 4 * r, sMG, sMG + 1))
    e("s_mov_b32 exec_lo, s%d" % (sST + 9)); e("s_mov_b32 exec_hi, 0")
    e("buffer_store_dwordx4 %s, v%d, s[%d:%d], s%d offen sc1" % (vr(a + 16, 4), vAH2, sWSD, sWSD + 3, sST + 8))
    e("s_mov_b64 exec, -1")
    ret()

    e("L_reduce:")
    e("v_lshlrev_b32 v1, 2, v%d" % vL)
    e("L_r0spin:")
    e("global_load_dword v2, v1, s[26:27] sc1")
    e("s_waitcnt vmcnt(0)")
    e("v_cmp_ne_u32 vcc, 0x01010101, v2")
    e("s_cbranch_vccz L_r0ok")
    bound(); e("s_sleep %d" % sleep); e("s_branch L_r0spin")
    e("L_r0ok:")
    e("v_lshrrev_b32 v1, 2, v%d" % vL); e("v_mul_u32_u24 v1, 1152, v1"); e("v_and_b32 v2, 3, v%d" % vL); e("v_lshl_add_u32 v1, v2, 4, v1")
    e("s_cmp_ge_u32 s2, 18"); e("s_cselect_b32 s%d, %d, 0" % (sST + 8, 128 * 1152 - 18 * 64))
    e("s_lshl_b32 s%d, s2, 6" % (sST + 9)); e("s_add_u32 s%d, s%d, s%d" % (sST + 8, sST + 8, sST + 9))
    e("s_mul_i32 s%d, s%d, %d" % (sST + 9, sB, 256 * 1152)); e("s_add_u32 s%d, s%d, s%d" % (sST + 8, sST + 8, sST + 9))
    e("s_add_u32 s%d, s%d, %d" % (sST + 8, sST + 8, WS_H2))
    a = vK
    e("L_r1spin:")
    e("s_mov_b32 s%d, s%d" % (sST + 9, sST + 8))
    for i in range(8):
        e("buffer_load_dwordx4 %s, v1, s[%d:%d], s%d offen sc1" % (vr(a + 4 * i, 4), sWSD, sWSD + 3, sST + 9))
        if i < 7: e("s_add_u32 s%d, s%d, %d" % (sST + 9, sST + 9, 16 * 1152))
    for i in range(8):
        e("s_waitcnt vmcnt(%d)" % (7 - i))
        if i == 0: e("v_max3_u32 v3, v%d, v%d, v%d" % (a, a + 1, a + 2)); e("v_max_u32 v3, v3, v%d" % (a + 3))
        else:
            e("v_max3_u32 v3, v3, v%d, v%d" % (a + 4 * i, a + 4 * i + 1)); e("v_max3_u32 v3, v3, v%d, v%d" % (a + 4 * i + 2, a + 4 * i + 3))
            e("v_pk_add_f32 %s, %s, %s" % (vr(a, 2), vr(a, 2), vr(a + 4 * i, 2)))
            e("v_pk_add_f32 %s, %s, %s" % (vr(a + 2, 2), vr(a + 2, 2), vr(a + 4 * i + 2, 2)))
    e("v_cmp_eq_u32 vcc, -1, v3")
    e("s_cbranch_vccz L_r1ok")
    bound(); e("s_sleep %d" % sleep); e("s_branch L_r1spin")
    e("L_r1ok:")
    for r in (4, 8):
        for i in range(4): e("v_add_f32_dpp v%d, v%d, v%d row_ror:%d row_mask:0xf bank_mask:0xf" % (a + i, a + i, a + i, r))
    e("s_mul_i32 s%d, s%d, 1152" % (sST + 8, sB)); e("s_lshl_b32 s%d, s2, 5" % (sST + 9)); e("s_add_u32 s%d, s%d, s%d" % (sST + 8, sST + 8, sST + 9))
    e("v_permlane32_swap_b32 v%d, v%d" % (a, a + 1)); e("v_permlane32_swap_b32 v%d, v%d" % (a + 2, a + 3))
    e("v_add_f32 v%d, v%d, v%d" % (a, a, a + 1)); e("v_add_f32 v%d, v%d, v%d" % (a + 2, a + 2, a + 3))
    e("v_lshrrev_b32 v3, 5, v%d" % vL); e("v_bfe_u32 v4, v%d, 4, 1" % vL)
    e("v_permlane16_swap_b32 v%d, v%d" % (a, a + 2))
    e("v_lshl_add_u32 v3, v4, 1, v3"); e("v_lshl_add_u32 v3, v2, 2, v3"); e("v_lshlrev_b32 v3, 1, v3")
    e("v_add_f32 v%d, v%d, v%d" % (a, a, a + 2))
    e("v_cvt_pk_bf16_f32 v%d, v%d, v%d" % (a, a, a))
    e("s_mov_b32 exec_lo, 0x000f000f"); e("s_mov_b32 exec_hi, 0x000f000f")
    e("buffer_store_short v%d, v3, s[%d:%d], s%d offen" % (a, sOUTD, sOUTD + 3, sST + 8))
    e("s_mov_b64 exec, -1")
    ret()

    nv = NV + (8 if stamps else 0)
    e('.section .rodata,"a"\n.p2align 6\n.amdhsa_kernel %s_kernel' % KN)
    e("  .amdhsa_next_free_vgpr %d\n  .amdhsa_next_free_sgpr 102\n  .amdhsa_accum_offset %d" % (nv, nv))
    e("  .amdhsa_group_segment_fixed_size 0\n  .amdhsa_kernarg_size 104\n  .amdhsa_user_sgpr_count 2\n  .amdhsa_user_sgpr_kernarg_segment_ptr 1\n  .amdhsa_system_sgpr_workgroup_id_x 1\n  .amdhsa_float_denorm_mode_32 3\n.end_amdhsa_kernel")
    txt = "\n".join(("    " + x if x and not x.endswith(":") and not x.startswith((";", ".", " ")) else x) for x in L) + "\n"
    return txt

if __name__ == "__main__":
    out = sys.argv[1]
    kw = {}
    for a in sys.argv[2:]:
        k, v = a.split("=")
        kw[k] = v.replace("+", " ") if k.endswith("pol") else int(v)
    t = gen(**kw)
    open(out, "w").write(t)
    for p in hazard.check(t): print("HAZARD", p)
```

```python
import sys, os
sys.path.insert(0, os.path.dirname(os.path.abspath(__file__)))
import hazard
KN = "concat_heads__sliding_block_cached__gqa_block_cached__decode"
HEADER = open(os.path.join(os.path.dirname(os.path.abspath(__file__)), "header.txt")).read()

def gen(stamps=0, D=3, phaseB=640, phaseA=128, pol="nt", wqpol="nt", wopol="nt", NTS=8, sleep=1, csleep=1, gsleep=1,
        nstatB=52, P0=3, barw=12, prio=1, diagspin=0, latereq=0, diag=0, woearly=1, XB=0, DE=5, mix=0):
    L = []
    def e(s=""):
        for x in s.split("\n"): L.append(x)
    NT_A, NT_B = 8, 64
    NT = NT_A + NT_B
    RING = NTS * 16384
    LB = RING
    O_LANDED, O_TOTAL, O_NEXT, O_CNTQ, O_CNTM, O_QRDY, O_OPR = 0, 4, 16, 32, 36, 44, 48
    O_OP = 64
    O_QB = 192
    O_SCR = 1216
    LDS_BYTES = RING + O_SCR + 6400
    WS_NONCE, WS_CTR, WS_H1 = 0x8000, 0x9000, 0x10000
    WS_H2 = WS_H1 + 512 * 1152
    WS_SIZE = WS_H2 + 512 * 1152
    dyn = nstatB < NT_B
    NSTAT = NT_A + nstatB
    NDYN = 16 * (NT_B - nstatB)
    LOG2E, SCALE = 0x3fb8aa3b, 0x3db504f3
    NRED, REDA = 36, 64
    sW, sH, sS, sWO, sBOUND, sCST, sCCNT = 3, 30, 31, 32, 33, 34, 35
    sKD, sVD = 36, 40
    sOFF, sOFF2, sLIN, sBASE, sMASK, sSLOT, sTI, sFREE, sTMP, sTMP2 = 44, 45, 46, 47, 48, 49, 51, 52, 53, 54
    sTAG = 55
    sWSD, sXD, sQD, sOD, sOUTD = 56, 60, 64, 68, 72
    sCTR, sTK = 60, 62
    sM1, sM2, sM3, sMG, sAL, sRET = 76, 78, 80, 82, 84, 86
    sRJ, sH2 = 88, 89
    sT, sSL, sNEED, sLAND, sB, sC = 90, 91, 92, 93, 94, 95
    sLOG2E, sSCALE, sPLO, sPHI = 96, 97, 98, 99
    sEND, sWI = 36, 37
    sRET2 = 38
    sST = 44
    vL = 0
    vQ, vK, vV, vO, vS, vP, vRA, vRB = 8, 24, 56, 88, 120, 128, 132, 164
    vAK0, vAV0, vAK, vAV = 196, 197, 198, 202
    vM, vMC, vLS, vPM = 210, 211, 212, 213
    vT = 217
    vLB, vX, vAWO, vAH2, vAMD, vAML, vANX = 232, 233, 234, 235, 236, 237, 238
    NV = 240
    def stamp(idx):
        if stamps:
            e("s_memrealtime s[100:101]"); e("s_waitcnt lgkmcnt(0)")
            e("v_writelane_b32 v%d, s100, %d" % (NV, 2 * idx)); e("v_writelane_b32 v%d, s101, %d" % (NV, 2 * idx + 1))
    def stamp_flush():
        if stamps:
            e("s_add_u32 s44, s28, 0x10000000"); e("s_addc_u32 s45, s29, 0")
            e("s_lshl_b32 s46, s2, 9"); e("s_lshl_b32 s47, s%d, 6" % sW); e("s_add_u32 s46, s46, s47")
            e("v_lshl_add_u32 v1, v%d, 2, s46" % vL)
            e("s_mov_b64 exec, 0xffff")
            e("global_store_dword v1, v%d, s[44:45]" % NV)
            e("s_mov_b64 exec, -1")
    uid = [0]
    def lab(n):
        uid[0] += 1; return "L_%s_%d" % (n, uid[0])
    def bound():
        e("s_sub_u32 s%d, s%d, 1" % (sBOUND, sBOUND)); e("s_cbranch_scc1 L_end")
    def srd(d, p, n):
        e("s_mov_b32 s%d, s%d" % (d, p)); e("s_mov_b32 s%d, s%d" % (d + 1, p + 1))
        e("s_mov_b32 s%d, %s" % (d + 2, n)); e("s_mov_b32 s%d, 0x20000" % (d + 3))
    def vr(b, n): return "v[%d:%d]" % (b, b + n - 1)
    def call(l, r=sRET): e("s_call_b64 s[%d:%d], %s" % (r, r + 1, l))
    def ret(r=sRET): e("s_setpc_b64 s[%d:%d]" % (r, r + 1))
    def slp(n):
        if n: e("s_sleep %d" % n)
    def lds_wait(addr_v, off, val, n_sleep, tmp=sST + 8):
        sp = lab("w"); ok = lab("ok")
        e("%s:" % sp)
        e("ds_read_b32 v1, v%d offset:%d" % (addr_v, off))
        e("s_waitcnt lgkmcnt(0)")
        e("v_readfirstlane_b32 s%d, v1" % tmp)
        e("s_cmp_ge_u32 s%d, %d" % (tmp, val)); e("s_cbranch_scc1 %s" % ok)
        bound(); slp(n_sleep); e("s_branch %s" % sp)
        e("%s:" % ok)
    def h2rec():
        e("s_lshr_b32 s%d, s%d, 3" % (sST + 6, sS)); e("s_lshl_b32 s%d, s%d, 7" % (sST + 6, sST + 6))
        e("s_lshl_b32 s%d, s%d, 3" % (sST + 7, sH)); e("s_add_u32 s%d, s%d, s%d" % (sST + 6, sST + 6, sST + 7))
        e("s_and_b32 s%d, s%d, 7" % (sST + 7, sS)); e("s_add_u32 s%d, s%d, s%d" % (sST + 6, sST + 6, sST + 7))
        e("s_mul_i32 s%d, s%d, 1152" % (sH2, sST + 6)); e("s_add_u32 s%d, s%d, %d" % (sH2, sH2, WS_H2))

    e(HEADER.rstrip())
    e("; @launch grid=(256,1,1) block=(320,1,1) lds=%d" % LDS_BYTES)
    e('.amdgcn_target "amdgcn-amd-amdhsa--gfx950"')
    e(".text\n.globl %s_kernel\n.p2align 8\n.type %s_kernel,@function\n%s_kernel:" % (KN, KN, KN))
    e("s_cmp_ge_u32 s2, 256")
    e("s_cbranch_scc1 L_end")
    e("s_load_dwordx16 s[4:19], s[0:1], 0")
    e("s_load_dwordx8 s[20:27], s[0:1], 64")
    e("s_load_dwordx2 s[28:29], s[0:1], 96")
    e("v_lshrrev_b32 v1, 6, v0")
    e("v_and_b32 v%d, 63, v0" % vL)
    e("v_readfirstlane_b32 s%d, v1" % sW)
    if mix:
        e("s_and_b32 s%d, s2, 7" % sS); e("s_mul_i32 s%d, s%d, %d" % (sS, sS, 16 * mix)); e("s_add_u32 s2, s2, s%d" % sS); e("s_and_b32 s2, s2, 255")
    e("s_lshr_b32 s%d, s2, 4" % sH)
    e("s_and_b32 s%d, s2, 15" % sS)
    e("s_mov_b32 s%d, 0x200000" % sBOUND)
    if diagspin: e("s_memrealtime s[98:99]")
    e("v_mov_b32 v%d, %d" % (vLB, LB))
    if stamps:
        e("v_mov_b32 v%d, 0" % NV); e("v_mov_b32 v241, 0"); e("v_mov_b32 v242, 0"); e("s_waitcnt lgkmcnt(0)"); stamp(0)
    e("s_cmp_lg_u32 s%d, 1" % sW)
    e("s_cbranch_scc1 L_notloader")
    if prio: e("s_setprio %d" % prio)
    e("v_lshrrev_b32 v1, 4, v%d" % vL)
    e("v_lshlrev_b32 v2, 1, v1")
    e("v_xor_b32 v2, v2, v%d" % vL)
    e("v_and_b32 v2, 15, v2")
    e("v_lshlrev_b32 v2, 4, v2")
    e("v_lshl_add_u32 v2, v1, 8, v2")
    e("v_xor_b32 v3, 0x80, v2")
    e("s_lshl_b32 s%d, s%d, 23" % (sBASE, sH))
    e("s_add_u32 s%d, s%d, 0x700000" % (sBASE, sBASE))
    e("s_mov_b32 s%d, 0xfffff" % sMASK)
    e("s_mul_i32 s%d, s%d, %d" % (sLIN, sH, phaseA * 1024))
    e("s_lshl_b32 s%d, s%d, 13" % (sTMP, sS))
    e("s_add_u32 s%d, s%d, s%d" % (sLIN, sLIN, sTMP))
    e("s_and_b32 s%d, s%d, s%d" % (sOFF, sLIN, sMASK))
    e("s_add_u32 s%d, s%d, s%d" % (sOFF, sOFF, sBASE))
    e("s_mov_b32 s%d, 0" % sSLOT)
    e("s_mov_b32 s%d, 0" % sTI)
    e("s_mov_b32 s%d, %d" % (sFREE, NTS))
    e("s_waitcnt lgkmcnt(0)")
    srd(sKD, 6, "0x8000000"); srd(sVD, 8, "0x8000000")
    if diag & 128: srd(sKD, 16, "0x8000000"); srd(sVD, 18, "0x8000000")
    if diag & 16:
        e("s_memrealtime s[96:97]"); e("s_waitcnt lgkmcnt(0)")
        e("L_dly:"); e("s_memrealtime s[94:95]"); e("s_waitcnt lgkmcnt(0)"); e("s_sub_u32 s94, s94, s96"); e("s_cmp_lt_u32 s94, 600"); e("s_cbranch_scc1 L_dly")
    if diag & 32:
        e("s_sub_u32 s%d, s%d, 0x700000" % (sBASE, sBASE)); e("s_mov_b32 s%d, 0x7fffff" % sMASK)
        e("s_mul_i32 s%d, s%d, %d" % (sLIN, sH, phaseB * 1024)); e("s_lshl_b32 s%d, s%d, 13" % (sTMP, sS)); e("s_add_u32 s%d, s%d, s%d" % (sLIN, sLIN, sTMP))
        e("s_and_b32 s%d, s%d, s%d" % (sOFF, sLIN, sMASK)); e("s_add_u32 s%d, s%d, s%d" % (sOFF, sOFF, sBASE))
    if diag & 64:
        e("s_mul_i32 s93, s2, 0x9e37"); e("s_lshr_b32 s93, s93, 4"); e("s_and_b32 s93, s93, 63")
        e("s_memrealtime s[96:97]"); e("s_waitcnt lgkmcnt(0)")
        e("L_dly:"); e("s_memrealtime s[94:95]"); e("s_waitcnt lgkmcnt(0)"); e("s_sub_u32 s94, s94, s96"); e("s_cmp_lt_u32 s94, s93"); e("s_cbranch_scc1 L_dly")
    def issue(d):
        e("s_mov_b32 m0, s%d" % sSLOT)
        e("s_add_u32 s%d, s%d, 4096" % (sOFF2, sOFF))
        for i in range(4):
            e("buffer_load_dwordx4 v%d, s[%d:%d], s%d offen offset:%d %s lds" % (2 + (i & 1), d, d + 3, sOFF, i * 1024, pol))
        e("s_add_u32 m0, s%d, 4096" % sSLOT)
        e("s_add_u32 s%d, s%d, 8192" % (sSLOT, sSLOT))
        for i in range(4):
            e("buffer_load_dwordx4 v%d, s[%d:%d], s%d offen offset:%d %s lds" % (2 + (i & 1), d, d + 3, sOFF2, i * 1024, pol))
        if d == sVD:
            e("s_cmp_eq_u32 s%d, %d" % (sSLOT, RING)); e("s_cselect_b32 s%d, 0, s%d" % (sSLOT, sSLOT))
    def req():
        e("s_mov_b32 s%d, 1" % sTK); e("s_atomic_add s%d, s[%d:%d], 0x0 glc" % (sTK, sCTR, sCTR + 1))
    def advance0():
        e("s_add_u32 s%d, s%d, 1" % (sTI, sTI))
        e("s_add_u32 s%d, s%d, 0x20000" % (sLIN, sLIN))
    def advance1(static=False):
        if not static:
            l = lab("nosw")
            if dyn:
                l2 = lab("stat"); l3 = lab("req")
                if latereq:
                    e("s_cmp_lt_u32 s%d, %d" % (sTI, NSTAT)); e("s_cbranch_scc1 %s" % l2)
                else:
                    e("s_cmp_lt_u32 s%d, %d" % (sTI, NSTAT - 1)); e("s_cbranch_scc1 %s" % l2)
                    e("s_cmp_lt_u32 s%d, %d" % (sTI, NSTAT)); e("s_cbranch_scc1 %s" % l3)
                e("s_waitcnt lgkmcnt(0)")
                e("s_cmp_ge_u32 s%d, %d" % (sTK, NDYN)); e("s_cbranch_scc1 L_ld_drain")
                e("s_lshl_b32 s%d, s%d, 13" % (sLIN, sTK))
                e("s_mul_i32 s%d, s%d, %d" % (sTMP, sH, phaseB * 1024))
                e("s_add_u32 s%d, s%d, s%d" % (sLIN, sLIN, sTMP))
                e("s_add_u32 s%d, s%d, %d" % (sLIN, sLIN, nstatB * 0x20000))
                if XB:
                    e("s_cmp_ge_u32 s%d, %d" % (sTK, NDYN - XB)); e("s_cbranch_scc1 L_ld_burst")
                if not latereq:
                    e("%s:" % l3); req()
                e("s_branch %s" % l)
                e("%s:" % l2)
            else:
                e("s_cmp_ge_u32 s%d, %d" % (sTI, NT)); e("s_cbranch_scc1 L_ld_drain")
            e("s_cmp_lg_u32 s%d, %d" % (sTI, NT_A)); e("s_cbranch_scc1 %s" % l)
            e("s_mov_b32 s%d, s16" % sKD); e("s_mov_b32 s%d, s17" % (sKD + 1))
            e("s_mov_b32 s%d, s18" % sVD); e("s_mov_b32 s%d, s19" % (sVD + 1))
            e("s_lshl_b32 s%d, s%d, 23" % (sBASE, sH))
            e("s_mov_b32 s%d, 0x7fffff" % sMASK)
            e("s_mul_i32 s%d, s%d, %d" % (sLIN, sH, phaseB * 1024))
            e("s_lshl_b32 s%d, s%d, 13" % (sTMP, sS))
            e("s_add_u32 s%d, s%d, s%d" % (sLIN, sLIN, sTMP))
            e("%s:" % l)
        e("s_and_b32 s%d, s%d, s%d" % (sOFF, sLIN, sMASK))
        e("s_add_u32 s%d, s%d, s%d" % (sOFF, sOFF, sBASE))
    for j in range(D):
        if j == P0: e("s_barrier")
        if j and j % 2 == 0: advance0(); advance1(True)
        issue(sKD if j % 2 == 0 else sVD)
    e("s_lshl_b32 s%d, s%d, 8" % (sTMP, sH)); e("s_add_u32 s%d, s%d, %d" % (sTMP, sTMP, WS_CTR))
    e("s_add_u32 s%d, s28, s%d" % (sCTR, sTMP)); e("s_addc_u32 s%d, s29, 0" % (sCTR + 1))
    if P0 >= D: e("s_barrier")
    def step(isK):
        if isK: advance0()
        e("s_lshl_b32 s%d, s%d, 1" % (sTMP, sTI))
        e("s_add_i32 s%d, s%d, %d" % (sTMP, sTMP, (0 if isK else 1) - D + 1))
        e("v_mov_b32 v4, s%d" % sTMP)
        e("s_waitcnt vmcnt(%d)" % ((D - 1) * 8))
        if isK and stamps == 2:
            e("s_waitcnt lgkmcnt(0)")
            e("s_sub_u32 s%d, s%d, 1" % (sTMP2, sTI)); e("s_and_b32 m0, s%d, 63" % sTMP2)
            l = lab("tr"); l2 = lab("tr2")
            e("s_cmp_ge_u32 s%d, 64" % sTMP2); e("s_cbranch_scc1 %s" % l)
            e("v_writelane_b32 v241, s98, m0"); e("s_branch %s" % l2)
            e("%s:" % l); e("v_writelane_b32 v242, s98, m0"); e("%s:" % l2)
            e("s_memrealtime s[98:99]")
        e("ds_max_u32 v%d, v4 offset:%d" % (vLB, O_LANDED))
        if isK:
            if stamps == 1:
                for idx, tt in enumerate((8, 12, 24, 48)):
                    l = lab("st"); e("s_cmp_lg_u32 s%d, %d" % (sTI, tt)); e("s_cbranch_scc1 %s" % l); stamp(3 + idx); e("%s:" % l)
            ok = lab("free"); sp = lab("fspin")
            e("s_cmp_lt_u32 s%d, s%d" % (sTI, sFREE)); e("s_cbranch_scc1 %s" % ok)
            e("%s:" % sp)
            e("ds_read_b96 v[8:10], v%d offset:%d" % (vLB, O_NEXT))
            e("s_waitcnt lgkmcnt(0)")
            e("v_min3_u32 v8, v8, v9, v10")
            e("s_nop 0")
            e("v_readfirstlane_b32 s%d, v8" % sFREE)
            e("s_add_u32 s%d, s%d, %d" % (sFREE, sFREE, NTS))
            e("s_cmp_lt_u32 s%d, s%d" % (sTI, sFREE)); e("s_cbranch_scc1 %s" % ok)
            e("s_lshl_b32 s%d, s%d, 1" % (sTMP, sTI))
            e("v_mov_b32 v4, s%d" % sTMP)
            e("s_waitcnt vmcnt(0)")
            e("ds_max_u32 v%d, v4 offset:%d" % (vLB, O_LANDED))
            bound(); slp(sleep); e("s_branch %s" % sp)
            e("%s:" % ok)
            advance1()
        elif dyn and latereq:
            l = lab("noreq")
            e("s_cmp_lt_u32 s%d, %d" % (sTI, NSTAT - 1)); e("s_cbranch_scc1 %s" % l); req(); e("%s:" % l)
        issue(sKD if isK else sVD)
    e("L_ld_loop:")
    if D % 2: step(False); step(True)
    else: step(True); step(False)
    e("s_branch L_ld_loop")
    if XB:
        e("L_ld_burst:")
        req()
        e("s_and_b32 s%d, s%d, s%d" % (sOFF, sLIN, sMASK)); e("s_add_u32 s%d, s%d, s%d" % (sOFF, sOFF, sBASE))
        issue(sKD); issue(sVD)
        e("s_add_u32 s%d, s%d, 1" % (sTI, sTI))
        e("s_lshl_b32 s%d, s%d, 1" % (sTMP, sTI))
        for k in range(DE - 1, DE - 3, -1):
            e("s_sub_u32 s%d, s%d, %d" % (sTMP2, sTMP, k)); e("v_mov_b32 v4, s%d" % sTMP2)
            e("s_waitcnt vmcnt(%d)" % (k * 8))
            e("ds_max_u32 v%d, v4 offset:%d" % (vLB, O_LANDED))
        e("L_bfree:")
        e("ds_read_b96 v[8:10], v%d offset:%d" % (vLB, O_NEXT))
        e("s_waitcnt lgkmcnt(0)")
        e("s_cmp_ge_u32 s%d, %d" % (sTK, NDYN)); e("s_cbranch_scc1 L_ld_drain")
        e("v_min3_u32 v8, v8, v9, v10")
        e("s_lshl_b32 s%d, s%d, 13" % (sLIN, sTK))
        e("v_readfirstlane_b32 s%d, v8" % sFREE)
        e("s_mul_i32 s%d, s%d, %d" % (sTMP2, sH, phaseB * 1024))
        e("s_add_u32 s%d, s%d, s%d" % (sLIN, sLIN, sTMP2))
        e("s_add_u32 s%d, s%d, %d" % (sLIN, sLIN, nstatB * 0x20000))
        e("s_add_u32 s%d, s%d, %d" % (sFREE, sFREE, NTS))
        e("s_cmp_lt_u32 s%d, s%d" % (sTI, sFREE)); e("s_cbranch_scc1 L_ld_burst")
        e("v_mov_b32 v4, s%d" % sTMP)
        e("s_waitcnt vmcnt(0)")
        e("ds_max_u32 v%d, v4 offset:%d" % (vLB, O_LANDED))
        bound(); e("s_branch L_bfree")
    e("L_ld_drain:")
    e("v_mov_b32 v5, s%d" % sTI)
    e("ds_write_b32 v%d, v5 offset:%d" % (vLB, O_TOTAL))
    e("s_lshl_b32 s%d, s%d, 1" % (sTMP, sTI))
    for k in range((max(D - 2, DE - 3) if XB else D - 2), -1, -1):
        e("s_sub_u32 s%d, s%d, %d" % (sTMP2, sTMP, k))
        e("v_mov_b32 v4, s%d" % sTMP2)
        e("s_waitcnt vmcnt(%d)" % (k * 8))
        e("ds_max_u32 v%d, v4 offset:%d" % (vLB, O_LANDED))
    if stamps: e("v_writelane_b32 v%d, s%d, 14" % (NV, sTI)); e("v_writelane_b32 v%d, 0, 15" % NV)
    stamp(1)
    if prio: e("s_setprio 0")
    e("s_mov_b32 s%d, 1" % sB); e("s_mov_b32 s%d, s2" % sRJ)
    e("s_cmp_lt_u32 s2, %d" % NRED); e("s_cbranch_scc1 L_reduce")
    e("s_mov_b32 s%d, 0" % sB); e("s_sub_u32 s%d, s2, %d" % (sRJ, REDA))
    e("s_cmp_lt_u32 s%d, %d" % (sRJ, NRED)); e("s_cbranch_scc1 L_reduce")
    e("L_ld_done:")
    if diagspin:
        e("L_dspin:"); e("s_memrealtime s[100:101]"); e("s_waitcnt lgkmcnt(0)"); e("s_sub_u32 s100, s100, s98")
        e("s_cmp_lt_u32 s100, %d" % diagspin); e("s_cbranch_scc1 L_dspin")
    stamp(2); stamp_flush()
    if stamps == 2:
        e("s_add_u32 s44, s28, 0x11000000"); e("s_addc_u32 s45, s29, 0")
        e("s_lshl_b32 s46, s2, 9"); e("v_lshl_add_u32 v1, v%d, 2, s46" % vL)
        e("global_store_dword v1, v241, s[44:45]"); e("global_store_dword v1, v242, s[44:45] offset:256")
    e("L_end:")
    e("s_endpgm")
    a = vK
    e("L_reduce:")
    srd(sWSD, 28, WS_SIZE); srd(sOUTD, 24, 2304)
    e("s_load_dword s%d, s[28:29], %d" % (sTAG, WS_NONCE))
    e("v_lshlrev_b32 v1, 2, v%d" % vL)
    e("L_r0spin:")
    e("global_load_dword v2, v1, s[26:27] sc1")
    e("s_waitcnt vmcnt(0)")
    e("v_cmp_ne_u32 vcc, 0x01010101, v2")
    e("s_cbranch_vccz L_r0ok")
    bound(); slp(gsleep); e("s_branch L_r0spin")
    e("L_r0ok:")
    e("v_lshrrev_b32 v1, 2, v%d" % vL); e("v_mul_u32_u24 v1, 1152, v1"); e("v_and_b32 v2, 3, v%d" % vL); e("v_lshl_add_u32 v1, v2, 4, v1")
    e("s_cmp_ge_u32 s%d, 18" % sRJ); e("s_cselect_b32 s%d, %d, 0" % (sST + 8, 128 * 1152 - 18 * 64))
    e("s_lshl_b32 s%d, s%d, 6" % (sST + 9, sRJ)); e("s_add_u32 s%d, s%d, s%d" % (sST + 8, sST + 8, sST + 9))
    e("s_mul_i32 s%d, s%d, %d" % (sST + 9, sB, 256 * 1152)); e("s_add_u32 s%d, s%d, s%d" % (sST + 8, sST + 8, sST + 9))
    e("s_add_u32 s%d, s%d, %d" % (sST + 8, sST + 8, WS_H2))
    e("s_mul_i32 s%d, s%d, 1152" % (sST + 6, sB)); e("s_lshl_b32 s%d, s%d, 5" % (sST + 7, sRJ)); e("s_add_u32 s%d, s%d, s%d" % (sST + 6, sST + 6, sST + 7))
    e("v_lshrrev_b32 v5, 5, v%d" % vL); e("v_bfe_u32 v4, v%d, 4, 1" % vL)
    e("v_lshl_add_u32 v5, v4, 1, v5"); e("v_lshl_add_u32 v5, v2, 2, v5"); e("v_lshlrev_b32 v5, 1, v5")
    e("s_mov_b64 s[%d:%d], 0" % (sST + 4, sST + 5))
    e("L_r1spin:")
    e("s_mov_b32 s%d, s%d" % (sST + 9, sST + 8))
    for i in range(8):
        e("buffer_load_dwordx4 %s, v1, s[%d:%d], s%d offen sc1" % (vr(a + 4 * i, 4), sWSD, sWSD + 3, sST + 9))
        if i < 7: e("s_add_u32 s%d, s%d, %d" % (sST + 9, sST + 9, 16 * 1152))
    for i in range(8):
        e("s_waitcnt vmcnt(%d)" % (7 - i))
        if i == 0: e("v_max3_u32 v3, v%d, v%d, v%d" % (a, a + 1, a + 2)); e("v_max_u32 v3, v3, v%d" % (a + 3))
        else:
            e("v_max3_u32 v3, v3, v%d, v%d" % (a + 4 * i, a + 4 * i + 1)); e("v_max3_u32 v3, v3, v%d, v%d" % (a + 4 * i + 2, a + 4 * i + 3))
            e("v_pk_add_f32 %s, %s, %s" % (vr(a, 2), vr(a, 2), vr(a + 4 * i, 2)))
            e("v_pk_add_f32 %s, %s, %s" % (vr(a + 2, 2), vr(a + 2, 2), vr(a + 4 * i + 2, 2)))
    e("v_cmp_eq_u32 vcc, -1, v3")
    if diag & 8: e("s_mov_b64 vcc, 0")
    e("s_and_b64 s[%d:%d], vcc, s[%d:%d]" % (sST + 2, sST + 3, sST + 4, sST + 5))
    e("s_cbranch_scc1 L_r1again")
    for r in (4, 8):
        for i in range(4): e("v_add_f32_dpp v%d, v%d, v%d row_ror:%d row_mask:0xf bank_mask:0xf" % (a + i, a + i, a + i, r))
    e("s_nop 0")
    e("v_permlane32_swap_b32 v%d, v%d" % (a, a + 1)); e("v_permlane32_swap_b32 v%d, v%d" % (a + 2, a + 3))
    e("v_add_f32 v%d, v%d, v%d" % (a, a, a + 1)); e("v_add_f32 v%d, v%d, v%d" % (a + 2, a + 2, a + 3))
    e("s_mov_b64 s[%d:%d], -1" % (sST + 4, sST + 5)); e("s_nop 0")
    e("v_permlane16_swap_b32 v%d, v%d" % (a, a + 2))
    e("v_add_f32 v%d, v%d, v%d" % (a, a, a + 2))
    e("v_cvt_pk_bf16_f32 v%d, v%d, v%d" % (a, a, a))
    e("s_cbranch_vccnz L_r1again")
    e("s_mov_b32 exec_lo, 0x000f000f"); e("s_mov_b32 exec_hi, 0x000f000f")
    e("buffer_store_short v%d, v5, s[%d:%d], s%d offen" % (a, sOUTD, sOUTD + 3, sST + 6))
    e("s_mov_b64 exec, -1")
    e("s_cmp_lg_u32 s2, 0"); e("s_cbranch_scc1 L_ld_done")
    e("s_waitcnt lgkmcnt(0)")
    e("s_add_u32 s%d, s%d, 0x9e3779b9" % (sTAG, sTAG))
    e("v_mov_b32 v1, s%d" % sTAG); e("v_mov_b32 v2, %d" % WS_NONCE)
    e("s_mov_b64 exec, 1"); e("buffer_store_dword v1, v2, s[%d:%d], 0 offen" % (sWSD, sWSD + 3)); e("s_mov_b64 exec, -1")
    e("s_branch L_ld_done")
    e("L_r1again:")
    bound(); slp(gsleep); e("s_branch L_r1spin")

    e("L_notloader:")
    e("s_cmp_eq_u32 s%d, 4" % sW)
    e("s_cbranch_scc1 L_service")
    e("s_sub_u32 s%d, s%d, 1" % (sC, sW)); e("s_cselect_b32 s%d, 0, s%d" % (sC, sC))
    rW, rX, rACC = 24, 72, 80
    e("v_lshrrev_b32 v1, 2, v%d" % vL)
    e("v_and_b32 v2, 3, v%d" % vL)
    e("v_mul_u32_u24 v3, 24, v1")
    e("v_mul_u32_u24 v4, %d, v1" % (12 * 8192))
    e("v_lshl_add_u32 v4, v2, 4, v4")
    e("s_lshr_b32 s%d, s%d, 3" % (sST, sS))
    e("s_mul_i32 s%d, s%d, 192" % (sST + 1, sC))
    e("s_lshl_b32 s%d, s%d, 1" % (sST + 2, sST + 1))
    e("s_lshl_b32 s%d, s%d, 13" % (sST + 3, sST + 1))
    e("s_lshl_b32 s%d, s%d, 9" % (sST + 4, sH))
    e("s_and_b32 s%d, s%d, 3" % (sST + 5, sS))
    e("s_lshl_b32 s%d, s%d, 7" % (sST + 5, sST + 5))
    e("s_add_u32 s%d, s%d, s%d" % (sST + 3, sST + 3, sST + 4))
    e("s_add_u32 s%d, s%d, s%d" % (sST + 3, sST + 3, sST + 5))
    e("s_lshl_b32 s%d, s%d, 6" % (sST + 5, sST))
    e("s_add_u32 s%d, s%d, s%d" % (sST + 3, sST + 3, sST + 5))
    e("s_mov_b32 s%d, 1152" % (sXD + 2)); e("s_mov_b32 s%d, 0x20000" % (sXD + 3))
    e("s_mov_b32 s%d, 4718592" % (sQD + 2)); e("s_mov_b32 s%d, 0x20000" % (sQD + 3))
    e("s_bitcmp1_b32 s%d, 2" % sS)
    e("s_waitcnt lgkmcnt(0)")
    e("s_cselect_b32 s%d, s20, s10" % sQD); e("s_cselect_b32 s%d, s21, s11" % (sQD + 1))
    e("s_cselect_b32 s%d, s14, s4" % sXD); e("s_cselect_b32 s%d, s15, s5" % (sXD + 1))
    for i in range(12):
        if not diag & 1: e("buffer_load_dwordx4 %s, v4, s[%d:%d], s%d offen %s" % (vr(rW + 4 * i, 4), sQD, sQD + 3, sST + 3, wqpol))
        if i < 11: e("s_add_u32 s%d, s%d, 8192" % (sST + 3, sST + 3))
        if i == 1:
            for k in range(3):
                e("buffer_load_dwordx2 %s, v3, s[%d:%d], s%d offen offset:%d" % (vr(rX + 2 * k, 2), sXD, sXD + 3, sST + 2, 8 * k))
    srd(sWSD, 28, WS_SIZE)
    h2rec()
    e("s_mov_b32 s%d, 0xcccccccc" % sM1); e("s_mov_b32 s%d, 0xcccccccc" % (sM1 + 1))
    e("s_mov_b32 s%d, 0xf0f0f0f0" % sM2); e("s_mov_b32 s%d, 0xf0f0f0f0" % (sM2 + 1))
    e("s_mov_b32 s%d, 0xff00ff00" % sM3); e("s_mov_b32 s%d, 0xff00ff00" % (sM3 + 1))
    e("s_mov_b32 s%d, 0xffff0000" % sMG); e("s_mov_b32 s%d, 0xffff0000" % (sMG + 1))
    e("s_mov_b32 s%d, %#x" % (sLOG2E, LOG2E)); e("s_mov_b32 s%d, %#x" % (sSCALE, SCALE))
    e("s_mov_b32 s%d, 0x05040100" % sPLO); e("s_mov_b32 s%d, 0x07060302" % sPHI)
    e("v_and_b32 v5, 15, v%d" % vL)
    e("v_lshrrev_b32 v6, 4, v%d" % vL)
    e("v_and_b32 v7, 7, v5"); e("v_lshlrev_b32 v7, 1, v7"); e("v_xor_b32 v7, v7, v6")
    e("v_lshlrev_b32 v7, 4, v7"); e("v_lshl_add_u32 v%d, v5, 8, v7" % vAK0)
    e("v_lshrrev_b32 v7, 2, v5"); e("v_lshl_add_u32 v7, v6, 2, v7")
    e("v_and_b32 v%d, 7, v7" % vT); e("v_lshlrev_b32 v%d, 5, v%d" % (vT, vT)); e("v_lshl_add_u32 v7, v7, 8, v%d" % vT)
    e("v_and_b32 v%d, 3, v5" % vT); e("v_lshl_add_u32 v7, v%d, 3, v7" % vT); e("v_add_u32 v%d, 0x2000, v7" % vAV0)
    e("v_mov_b32 v7, 0xffff"); e("v_mov_b32 v%d, 0xffff0000" % vT)
    e("v_cndmask_b32 v7, v7, v%d, s[%d:%d]" % (vT, sM1, sM1 + 1))
    e("v_lshrrev_b32 v%d, 2, v5" % vT)
    for p in range(4):
        e("v_cmp_eq_u32 vcc, %d, v%d" % (p, vT)); e("s_nop 1"); e("v_cndmask_b32 v%d, 0, v7, vcc" % (vPM + p))
    e("s_lshl_b32 s%d, s%d, 4" % (sCST, sC))
    e("s_cmp_eq_u32 s%d, 2" % sC); e("s_cselect_b32 s%d, 4, 16" % sCCNT)
    e("s_cmp_eq_u32 s%d, 0" % sST); e("s_cbranch_scc1 L_sc0")
    e("s_sub_u32 s%d, s%d, 12" % (sCST, sCST))
    e("s_cmp_eq_u32 s%d, 0" % sC); e("s_cselect_b32 s%d, 4, 16" % sCCNT); e("s_cselect_b32 s%d, 0, s%d" % (sCST, sCST))
    e("L_sc0:")
    e("s_sub_u32 s%d, s%d, 1" % (sST + 8, sCCNT))
    e("v_min_u32 v7, s%d, v5" % (sST + 8))
    e("v_mul_u32_u24 v%d, %d, v6" % (vT, 8 * 1152))
    e("v_lshl_add_u32 v%d, v7, 4, v%d" % (vAWO, vT))
    e("v_lshlrev_b32 v7, 5, v5"); e("v_lshl_add_u32 v%d, v6, 4, v7" % vAH2)
    e("s_lshl_b32 s%d, s%d, 3" % (sST + 8, sH)); e("s_and_b32 s%d, s%d, 7" % (sST + 9, sS)); e("s_add_u32 s%d, s%d, s%d" % (sST + 8, sST + 8, sST + 9))
    e("s_mul_i32 s%d, s%d, %d" % (sST + 8, sST + 8, 32 * 1152))
    e("s_mul_i32 s%d, s%d, 576" % (sST + 9, sST)); e("s_add_u32 s%d, s%d, s%d" % (sST + 8, sST + 8, sST + 9))
    e("s_lshl_b32 s%d, s%d, 4" % (sST + 9, sCST)); e("s_add_u32 s%d, s%d, s%d" % (sWO, sST + 8, sST + 9))
    e("s_mul_i32 s%d, s%d, 1056" % (sST + 8, sC)); e("s_add_u32 s%d, s%d, %d" % (sST + 8, sST + 8, LB + O_SCR))
    e("v_lshrrev_b32 v7, 5, v%d" % vL); e("v_lshlrev_b32 v7, 9, v7")
    e("v_and_b32 v%d, 31, v%d" % (vT, vL)); e("v_lshl_add_u32 v7, v%d, 2, v7" % vT); e("v_add_u32 v%d, s%d, v7" % (vAMD, sST + 8))
    e("v_and_b32 v7, 1, v%d" % vL); e("v_lshlrev_b32 v7, 3, v7"); e("v_add_u32 v%d, s%d, v7" % (vAML, sST + 8))
    e("s_lshl_b32 s%d, s%d, 2" % (sST + 8, sC)); e("v_add_u32 v%d, s%d, v%d" % (vANX, sST + 8, vLB))
    e("v_and_b32 v7, 1, v%d" % vL); e("v_lshlrev_b32 v7, 8, v7")
    e("v_lshl_add_u32 v7, v6, 4, v7"); e("v_add_u32 v%d, v7, v%d" % (vX, vLB))
    for k in range(8): e("v_mov_b32 v%d, 0" % (rACC + k))
    if barw < 12: e("s_waitcnt vmcnt(%d)" % barw)
    e("s_barrier")
    for pr in range(6):
        e("s_waitcnt vmcnt(%d)" % (10 - 2 * pr))
        for d in range(4):
            lo, hi = rW + 8 * pr + d, rW + 8 * pr + 4 + d
            e("v_perm_b32 v%d, v%d, v%d, s%d" % (vT + 2 * d, hi, lo, sPLO))
            e("v_perm_b32 v%d, v%d, v%d, s%d" % (vT + 2 * d + 1, hi, lo, sPHI))
        for k in range(8):
            e("v_dot2_f32_bf16 v%d, v%d, v%d, v%d" % (rACC + k, vT + k, rX + pr, rACC + k))
    e("s_lshl_b32 s%d, s%d, 11" % (sST + 8, sC)); e("s_add_u32 s%d, s%d, %d" % (sST + 8, sST + 8, LB + O_SCR))
    e("v_lshl_add_u32 v7, v%d, 5, s%d" % (vL, sST + 8))
    e("v_mov_b32 v2, 1")
    e("ds_write_b128 v7, %s" % vr(rACC, 4)); e("ds_write_b128 v7, %s offset:16" % vr(rACC + 4, 4))
    e("s_waitcnt lgkmcnt(0)")
    e("s_mov_b64 exec, 1"); e("ds_add_u32 v%d, v2 offset:%d" % (vLB, O_CNTQ)); e("s_mov_b64 exec, -1")
    stamp(1)
    lds_wait(vLB, O_QRDY, 1, csleep)
    stamp(2)
    e("s_mov_b32 s%d, s%d" % (sT, sC)); e("s_lshl_b32 s%d, s%d, 14" % (sSL, sC)); e("s_mov_b32 s%d, 0" % sLAND)
    e("s_mov_b32 s%d, 0" % sB); e("s_mov_b32 s%d, 0" % sWI)
    call("L_begin")
    e("s_mov_b32 s%d, %d" % (sEND, NT_A)); call("L_tiles")
    call("L_dump")
    stamp(3)
    e("s_mov_b32 s%d, 1" % sB)
    call("L_begin")
    e("s_mov_b32 s%d, 0x7fffffff" % sEND); call("L_tiles")
    e("s_cmp_lg_u32 s%d, 0" % sWI); e("s_cbranch_scc1 L_wodone")
    call("L_woload", sRET2)
    e("L_wodone:")
    stamp(4)
    call("L_dump")
    stamp(5)
    def woperm(raw):
        for ee in range(8):
            for p in range(4):
                e("v_perm_b32 v%d, v%d, v%d, s%d" % (vO + 4 * ee + p, raw + 4 * (2 * p + 1) + ee // 2, raw + 4 * (2 * p) + ee // 2, sPHI if ee & 1 else sPLO))
    e("s_waitcnt vmcnt(8)")
    woperm(vRA)
    e("s_mov_b32 s%d, 0" % sB)
    call("L_proj")
    e("s_waitcnt vmcnt(1)")
    woperm(vRB)
    e("s_mov_b32 s%d, 1" % sB)
    call("L_proj")
    stamp(6); stamp_flush()
    e("s_endpgm")

    e("L_proj:")
    e("s_lshl_b32 s%d, s%d, 2" % (sST + 9, sB)); e("v_add_u32 v3, s%d, v%d" % (sST + 9, vLB))
    e("s_lshl_b32 s%d, s%d, 6" % (sST + 9, sB)); e("v_and_b32 v4, 48, v%d" % vL); e("v_add3_u32 v4, v4, s%d, v%d" % (sST + 9, vLB))
    e("s_mul_i32 s%d, s%d, %d" % (sST + 6, sB, 256 * 1152)); e("s_add_u32 s%d, s%d, s%d" % (sST + 6, sST + 6, sH2))
    e("s_lshl_b32 s%d, s%d, 5" % (sST + 9, sCST)); e("s_add_u32 s%d, s%d, s%d" % (sST + 6, sST + 6, sST + 9))
    e("s_bfm_b32 s%d, s%d, 0" % (sST + 7, sCCNT)); e("s_mul_i32 s%d, s%d, 0x10001" % (sST + 7, sST + 7))
    e("L_pspin:")
    e("ds_read_b32 v1, v3 offset:%d" % O_OPR)
    e("ds_read_b128 %s, v4 offset:%d" % (vr(vK, 4), O_OP))
    e("s_waitcnt lgkmcnt(1)")
    e("v_readfirstlane_b32 s%d, v1" % (sST + 8))
    e("s_cmp_lg_u32 s%d, 0" % (sST + 8)); e("s_cbranch_scc1 L_pok")
    bound(); e("s_branch L_pspin")
    e("L_pok:")
    e("s_waitcnt lgkmcnt(0)")
    for ee in range(8):
        e("v_mfma_f32_16x16x32_bf16 %s, %s, %s, 0" % (vr(vV + 4 * ee, 4), vr(vK, 4), vr(vO + 4 * ee, 4)))
    e("s_nop 4")
    for r in range(4): e("v_cndmask_b32 v%d, v%d, v%d, s[%d:%d]" % (vK + 4 + r, vV + 4 * r, vV + 16 + 4 * r, sMG, sMG + 1))
    e("s_mov_b32 exec_lo, s%d" % (sST + 7)); e("s_mov_b32 exec_hi, 0")
    e("buffer_store_dwordx4 %s, v%d, s[%d:%d], s%d offen sc1" % (vr(vK + 4, 4), vAH2, sWSD, sWSD + 3, sST + 6))
    e("s_mov_b64 exec, -1")
    ret()

    e("L_begin:")
    e("s_lshl_b32 s%d, s%d, 9" % (sST + 8, sB))
    e("v_add_u32 v1, s%d, v%d" % (sST + 8, vX))
    for k in range(4): e("ds_read_b128 %s, v1 offset:%d" % (vr(vQ + 4 * k, 4), O_QB + k * 64))
    e("v_mov_b32 v%d, 0xff61b1e6" % vM)
    e("v_mov_b32 v%d, 0" % vMC); e("v_mov_b32 v%d, 0" % vLS)
    for i in range(32): e("v_mov_b32 v%d, 0" % (vO + i))
    e("s_waitcnt lgkmcnt(0)")
    ret()

    e("L_woload:")
    e("s_mov_b32 s%d, 1" % sWI)
    e("s_add_u32 s%d, s%d, %d" % (sST + 8, sWO, 4 * 1152))
    for raw, p in ((vRA, 12), (vRB, 22)):
        srd(sOD, p, 4718592)
        for i in range(8):
            e("buffer_load_dwordx4 %s, v%d, s[%d:%d], s%d offen offset:%d %s" % (vr(raw + 4 * i, 4), vAWO, sOD, sOD + 3, sWO if i < 4 else sST + 8, (i % 4) * 1152, wopol))
    ret(sRET2)

    e("L_tiles:")
    e("s_cmp_ge_u32 s%d, s%d" % (sT, sEND)); e("s_cbranch_scc1 L_tiles_ret")
    e("L_tile:")
    e("s_lshl_b32 s%d, s%d, 1" % (sNEED, sT)); e("s_add_u32 s%d, s%d, 1" % (sNEED, sNEED))
    e("v_add_u32 v%d, s%d, v%d" % (vAK, sSL, vAK0))
    e("v_add_u32 v%d, s%d, v%d" % (vAV, sSL, vAV0))
    for k in range(1, 4): e("v_xor_b32 v%d, %d, v%d" % (vAK + k, k << 6, vAK))
    for cg in range(1, 8): e("v_xor_b32 v%d, %d, v%d" % (vAV + cg, cg << 5, vAV))
    e("s_cmp_ge_u32 s%d, s%d" % (sLAND, sNEED)); e("s_cbranch_scc1 L_kok")
    e("L_kspin:")
    e("ds_read_b64 v[2:3], v%d offset:%d" % (vLB, O_LANDED))
    e("s_waitcnt lgkmcnt(0)")
    e("v_readfirstlane_b32 s%d, v2" % sLAND)
    e("v_readfirstlane_b32 s%d, v3" % (sST + 9))
    e("s_cmp_ge_u32 s%d, s%d" % (sLAND, sNEED)); e("s_cbranch_scc1 L_kok")
    e("s_cmp_ge_u32 s%d, s%d" % (sT, sST + 9)); e("s_cbranch_scc1 L_tiles_ret")
    e("s_and_b32 s%d, s%d, 0x80000000" % (sST + 9, sST + 9)); e("s_or_b32 s%d, s%d, s%d" % (sST + 9, sST + 9, sWI))
    e("s_cbranch_scc1 L_knowo")
    if woearly: call("L_woload", sRET2)
    e("L_knowo:")
    bound(); slp(csleep); e("s_branch L_kspin")
    e("L_kok:")
    for k in range(4):
        for blk in range(2):
            e("ds_read_b128 %s, v%d offset:%d" % (vr(vK + 16 * blk + 4 * k, 4), vAK + k, blk * 4096))
    e("s_add_u32 s%d, s%d, 1" % (sNEED, sNEED))
    e("s_add_u32 s%d, s%d, %d" % (sSL, sSL, 3 * 16384))
    e("s_cmp_ge_u32 s%d, %d" % (sSL, RING)); e("s_cselect_b32 s%d, %d, 0" % (sST + 8, RING)); e("s_sub_u32 s%d, s%d, s%d" % (sSL, sSL, sST + 8))
    e("s_add_u32 s%d, s%d, 3" % (sT, sT))
    for k in range(4):
        e("s_waitcnt lgkmcnt(%d)" % (6 - 2 * k))
        for blk in range(2):
            e("v_mfma_f32_16x16x32_bf16 %s, %s, %s, %s" % (vr(vS + 4 * blk, 4), vr(vK + 16 * blk + 4 * k, 4), vr(vQ + 4 * k, 4), "0" if k == 0 else vr(vS + 4 * blk, 4)))
    e("v_mov_b32 v4, s%d" % sT)
    e("s_nop 5")
    t = vT
    e("v_cndmask_b32 v%d, v%d, v%d, s[%d:%d]" % (t, vS, vS + 1, sM1, sM1 + 1))
    e("v_cndmask_b32 v%d, v%d, v%d, s[%d:%d]" % (t + 1, vS + 2, vS + 3, sM1, sM1 + 1))
    e("v_cndmask_b32 v%d, v%d, v%d, s[%d:%d]" % (t + 2, vS + 4, vS + 5, sM1, sM1 + 1))
    e("v_cndmask_b32 v%d, v%d, v%d, s[%d:%d]" % (t + 3, vS + 6, vS + 7, sM1, sM1 + 1))
    e("v_cndmask_b32 v%d, v%d, v%d, s[%d:%d]" % (t, t, t + 1, sM2, sM2 + 1))
    e("v_cndmask_b32 v%d, v%d, v%d, s[%d:%d]" % (t + 2, t + 2, t + 3, sM2, sM2 + 1))
    e("v_cndmask_b32 v%d, v%d, v%d, s[%d:%d]" % (t, t, t + 2, sM3, sM3 + 1))
    e("v_cvt_pk_bf16_f32 v%d, v%d, v%d" % (t, t, t))
    e("v_and_b32 v%d, 0xffff0000, v%d" % (t, t))
    e("v_mul_f32 v%d, s%d, v%d" % (t, sSCALE, t))
    e("v_cvt_pk_bf16_f32 v%d, v%d, v%d" % (t, t, t))
    e("v_and_b32 v%d, 0xffff0000, v%d" % (t, t))
    e("v_cmp_gt_f32 vcc, v%d, v%d" % (t, vM))
    e("s_cbranch_vccnz L_newmax")
    e("L_maxok:")
    e("v_fma_f32 v%d, v%d, s%d, v%d" % (t, t, sLOG2E, vMC))
    e("v_exp_f32 v%d, v%d" % (t, t))
    e("s_cmp_ge_u32 s%d, s%d" % (sLAND, sNEED))
    e("v_add_f32 v%d, v%d, v%d" % (vLS, vLS, t))
    e("v_cvt_pk_bf16_f32 v%d, v%d, v%d" % (t, t, t))
    for p in range(4): e("v_and_b32 v%d, v%d, v%d" % (vP + p, t, vPM + p))
    e("s_cbranch_scc1 L_vok")
    e("L_vspin:")
    e("ds_read_b32 v2, v%d offset:%d" % (vLB, O_LANDED))
    e("s_waitcnt lgkmcnt(0)")
    e("v_readfirstlane_b32 s%d, v2" % sLAND)
    e("s_cmp_ge_u32 s%d, s%d" % (sLAND, sNEED)); e("s_cbranch_scc1 L_vok")
    bound(); e("s_branch L_vspin")
    e("L_vok:")
    for cg in range(8):
        for blk in range(2):
            e("ds_read_b64_tr_b16 %s, v%d offset:%d" % (vr(vV + 4 * cg + 2 * blk, 2), vAV + cg, blk * 4096))
    for cg in range(8):
        e("s_waitcnt lgkmcnt(%d)" % (14 - 2 * cg))
        if cg == 7: e("ds_write_b32 v%d, v4 offset:%d" % (vANX, O_NEXT))
        e("v_mfma_f32_16x16x32_bf16 %s, %s, %s, %s" % (vr(vO + 4 * cg, 4), vr(vP, 4), vr(vV + 4 * cg, 4), vr(vO + 4 * cg, 4)))
    e("s_cmp_lt_u32 s%d, s%d" % (sT, sEND)); e("s_cbranch_scc1 L_tile")
    e("L_tiles_ret:")
    ret()
    e("L_newmax:")
    e("v_max_f32 v%d, v%d, v%d" % (t + 1, t, vM))
    for r in (2, 4, 8):
        e("s_nop 1"); e("v_max_f32_dpp v%d, v%d, v%d row_ror:%d row_mask:0xf bank_mask:0xf" % (t + 1, t + 1, t + 1, r))
    for sw in ("16", "32"):
        e("v_mov_b32 v%d, v%d" % (t + 2, t + 1)); e("s_nop 1")
        e("v_permlane%s_swap_b32 v%d, v%d" % (sw, t + 1, t + 2)); e("v_max_f32 v%d, v%d, v%d" % (t + 1, t + 1, t + 2))
    e("v_sub_f32 v%d, v%d, v%d" % (t + 2, vM, t + 1))
    e("v_mul_f32 v%d, s%d, v%d" % (t + 2, sLOG2E, t + 2))
    e("v_exp_f32 v%d, v%d" % (t + 2, t + 2))
    e("v_mov_b32 v%d, v%d" % (vM, t + 1))
    e("v_mul_f32 v%d, s%d, v%d" % (vMC, sLOG2E, t + 1))
    e("v_readlane_b32 s%d, v%d, 0" % (sAL, t + 2)); e("v_readlane_b32 s%d, v%d, 1" % (sAL + 1, t + 2))
    e("v_sub_f32 v%d, 0, v%d" % (vMC, vMC))
    e("v_mul_f32 v%d, v%d, v%d" % (vLS, vLS, t + 2))
    for i in range(16): e("v_pk_mul_f32 %s, %s, s[%d:%d]" % (vr(vO + 2 * i, 2), vr(vO + 2 * i, 2), sAL, sAL + 1))
    e("s_branch L_maxok")

    e("L_dump:")
    e("s_mul_i32 s%d, s%d, %d" % (sST + 8, sB, 3 * 1056))
    e("v_add_u32 v4, s%d, v%d" % (sST + 8, vAMD)); e("v_add_u32 v5, s%d, v%d" % (sST + 8, vAML))
    e("v_mov_b32 v6, v%d" % vM)
    e("v_add_f32_dpp v7, v%d, v%d row_ror:2 row_mask:0xf bank_mask:0xf" % (vLS, vLS))
    e("s_lshl_b32 s%d, s%d, 2" % (sST + 9, sB)); e("v_add_u32 v3, s%d, v%d" % (sST + 9, vLB))
    e("v_add_f32_dpp v7, v7, v7 row_ror:4 row_mask:0xf bank_mask:0xf")
    e("v_mov_b32 v2, 1")
    pk = ["v_pk_add_f32 %s, %s, %s" % (vr(vO + 4 * cg, 2), vr(vO + 4 * cg, 2), vr(vO + 4 * cg + 2, 2)) for cg in range(8)]
    e(pk[0]); e("v_add_f32_dpp v7, v7, v7 row_ror:8 row_mask:0xf bank_mask:0xf")
    e(pk[1]); e("v_mov_b32 v1, v7"); e(pk[2]); e(pk[3])
    e("v_permlane16_swap_b32 v7, v1"); e(pk[4]); e("v_add_f32 v7, v7, v1"); e(pk[5]); e("v_mov_b32 v1, v7"); e(pk[6]); e(pk[7])
    e("v_permlane32_swap_b32 v7, v1")
    for cg in range(8):
        e("v_permlane32_swap_b32 v%d, v%d" % (vO + 4 * cg, vO + 4 * cg + 1))
        if cg == 0: e("v_add_f32 v7, v7, v1")
        if cg == 1: e("ds_write_b64 v5, v[6:7] offset:1024")
    for cg in range(8): e("v_add_f32 v%d, v%d, v%d" % (vO + 4 * cg, vO + 4 * cg, vO + 4 * cg + 1))
    for c2 in range(4): e("v_permlane16_swap_b32 v%d, v%d" % (vO + 8 * c2, vO + 8 * c2 + 4))
    for c2 in range(4):
        e("v_add_f32 v%d, v%d, v%d" % (vO + 8 * c2, vO + 8 * c2, vO + 8 * c2 + 4))
        e("ds_write_b32 v4, v%d offset:%d" % (vO + 8 * c2, c2 * 128))
    e("s_mov_b64 exec, 1"); e("ds_add_u32 v3, v2 offset:%d" % O_CNTM); e("s_mov_b64 exec, -1")
    ret()

    e("L_service:")
    rW = 24
    vAH1, vAH1L = 8, 9
    e("v_mov_b32 v2, 0"); e("v_mov_b32 v3, -1"); e("v_mov_b32 v4, 0"); e("v_mov_b32 v5, 1"); e("v_mov_b32 v6, 2")
    for i in range(4): e("v_mov_b32 v%d, 0" % (12 + i))
    e("ds_write_b64 v%d, v[2:3] offset:%d" % (vLB, O_LANDED))
    e("ds_write_b96 v%d, v[4:6] offset:%d" % (vLB, O_NEXT))
    e("ds_write_b128 v%d, v[12:15] offset:32" % vLB)
    e("ds_write_b128 v%d, v[12:15] offset:48" % vLB)
    h2rec()
    e("s_mul_i32 s%d, s2, 1152" % (sST + 5)); e("s_add_u32 s%d, s%d, %d" % (sST + 5, sST + 5, WS_H1))
    for i in range(4): e("v_mov_b32 v%d, -1" % (16 + i))
    e("v_lshlrev_b32 v7, 4, v%d" % vL)
    e("s_sub_u32 s%d, s%d, s%d" % (sST + 4, sH2, sST + 5))
    e("v_and_b32 v10, 7, v%d" % vL); e("v_lshlrev_b32 v10, 4, v10")
    e("v_bfe_u32 v11, v%d, 3, 1" % vL); e("v_mul_u32_u24 v11, %d, v11" % (256 * 1152)); e("v_add_u32 v10, v10, v11")
    e("v_bfe_u32 v11, v%d, 4, 1" % vL); e("v_mul_lo_u32 v11, v11, s%d" % (sST + 4)); e("v_add_u32 v10, v10, v11")
    e("s_waitcnt lgkmcnt(0)")
    e("s_load_dword s%d, s[28:29], %d" % (sTAG, WS_NONCE))
    srd(sWSD, 28, WS_SIZE)
    e("s_barrier")
    e("s_add_u32 s%d, s%d, %d" % (sST + 6, sST + 5, 256 * 1152)); e("s_add_u32 s%d, s%d, %d" % (sST + 7, sH2, 256 * 1152))
    for so in (sST + 5, sST + 6, sH2, sST + 7):
        if not diag & 2: e("buffer_store_dwordx4 v[16:19], v7, s[%d:%d], s%d offen sc1" % (sWSD, sWSD + 3, so))
    e("s_mov_b32 exec_hi, 0")
    e("buffer_store_dwordx4 v[16:19], v10, s[%d:%d], s%d offen offset:1024 sc1" % (sWSD, sWSD + 3, sST + 5))
    e("s_mov_b64 exec, -1")
    if dyn:
        e("s_cmp_lg_u32 s%d, 0" % sS); e("s_cbranch_scc1 L_noz")
        e("s_lshl_b32 s%d, s%d, 8" % (sST + 7, sH)); e("s_add_u32 s%d, s%d, %d" % (sST + 7, sST + 7, WS_CTR))
        e("s_mov_b64 exec, 1"); e("buffer_store_dword v2, v2, s[%d:%d], s%d offen sc1" % (sWSD, sWSD + 3, sST + 7)); e("s_mov_b64 exec, -1")
        e("L_noz:")
    e("s_mov_b32 s%d, %#x" % (sLOG2E, LOG2E))
    e("v_and_b32 v5, 15, v%d" % vL); e("v_lshrrev_b32 v6, 4, v%d" % vL)
    e("v_mul_u32_u24 v%d, 1152, v5" % vAH1L)
    e("v_lshl_add_u32 v%d, v6, 5, v%d" % (vAH1, vAH1L))
    e("v_mul_u32_u24 v10, %d, v6" % (12 * 128)); e("v_lshlrev_b32 v11, 3, v5"); e("v_add3_u32 v10, v10, v11, v%d" % vLB)
    e("s_lshr_b32 s%d, s%d, 3" % (sST, sS))
    e("s_and_b32 s%d, s%d, 7" % (sST + 9, sS)); e("s_lshl_b32 s%d, s%d, 1" % (sST + 9, sST + 9)); e("s_add_u32 s%d, s%d, s%d" % (sST + 9, sST + 9, sST))
    e("s_lshl_b32 s%d, s%d, 7" % (sST + 9, sST + 9))
    e("s_lshl_b32 s%d, s%d, 11" % (sST + 10, sH))
    e("s_add_u32 s%d, s%d, s%d" % (sST + 9, sST + 10, sST + 9))
    lds_wait(vLB, O_CNTQ, 3, csleep)
    for r in range(12): e("ds_read_b64 %s, v10 offset:%d" % (vr(rW + 2 * r, 2), O_SCR + r * 128))
    e("s_add_u32 s%d, s%d, 0x9e3779b9" % (sTAG, sTAG))
    e("v_mov_b32 v2, s2"); e("v_mov_b32 v1, 1")
    e("s_waitcnt lgkmcnt(0)")
    n = 12
    while n > 1:
        h2 = n // 2
        for r in range(h2): e("v_pk_add_f32 %s, %s, %s" % (vr(rW + 2 * r, 2), vr(rW + 2 * r, 2), vr(rW + 2 * (n - h2 + r), 2)))
        n -= h2
    for sw in ("16", "32"):
        e("v_mov_b32 v%d, v%d" % (rW + 2, rW)); e("v_mov_b32 v%d, v%d" % (rW + 3, rW + 1)); e("s_nop 0")
        e("v_permlane%s_swap_b32 v%d, v%d" % (sw, rW, rW + 2)); e("v_permlane%s_swap_b32 v%d, v%d" % (sw, rW + 1, rW + 3))
        e("v_pk_add_f32 %s, %s, %s" % (vr(rW, 2), vr(rW, 2), vr(rW + 2, 2)))
    e("v_cvt_pk_bf16_f32 v%d, v%d, v%d" % (rW, rW, rW + 1))
    e("v_mov_b32 v%d, s%d" % (rW + 1, sTAG))
    e("s_waitcnt vmcnt(0)")
    e("s_mov_b64 exec, 0xffff")
    e("buffer_store_dwordx2 %s, v11, s[%d:%d], s%d offen sc1" % (vr(rW, 2), sWSD, sWSD + 3, sST + 9))
    e("s_mov_b64 exec, -1")
    stamp(1)
    e("L_qspin:")
    for j in range(2):
        e("buffer_load_dwordx4 %s, v7, s[%d:%d], s%d offen offset:%d sc1" % (vr(rW + 4 * j, 4), sWSD, sWSD + 3, sST + 10, j * 1024))
    e("s_waitcnt vmcnt(0)")
    e("v_xor_b32 v%d, s%d, v%d" % (rW + 1, sTAG, rW + 1)); e("v_xor_b32 v%d, s%d, v%d" % (rW + 3, sTAG, rW + 3))
    e("v_xor_b32 v%d, s%d, v%d" % (rW + 5, sTAG, rW + 5)); e("v_xor_b32 v%d, s%d, v%d" % (rW + 7, sTAG, rW + 7))
    e("v_or3_b32 v4, v%d, v%d, v%d" % (rW + 1, rW + 3, rW + 5)); e("v_or_b32 v4, v4, v%d" % (rW + 7))
    e("v_cmp_ne_u32 vcc, 0, v4")
    e("s_branch L_qready" if diag & 4 else "s_cbranch_vccz L_qready")
    bound(); slp(gsleep); e("s_branch L_qspin")
    e("L_qready:")
    e("v_lshl_add_u32 v4, v%d, 3, v%d" % (vL, vLB))
    e("v_mov_b32 v%d, v%d" % (rW + 1, rW + 2)); e("v_mov_b32 v%d, v%d" % (rW + 5, rW + 6))
    e("ds_write_b64 v4, %s offset:%d" % (vr(rW, 2), O_QB)); e("ds_write_b64 v4, %s offset:%d" % (vr(rW + 4, 2), O_QB + 512))
    e("ds_write_b32 v%d, v1 offset:%d" % (vLB, O_QRDY))
    e("s_mov_b64 exec, 1"); e("global_store_byte v2, v1, s[26:27] sc1"); e("s_mov_b64 exec, -1")
    stamp(2)
    e("s_mov_b32 s%d, 0" % sB)
    e("L_svc_branch:")
    a = rW
    e("s_mul_i32 s%d, s%d, %d" % (sST + 2, sB, 3 * 1056)); e("s_add_u32 s%d, s%d, %d" % (sST + 2, sST + 2, LB + O_SCR))
    e("v_lshl_add_u32 v4, v%d, 4, s%d" % (vL, sST + 2))
    e("v_lshrrev_b32 v12, 5, v%d" % vL); e("v_lshl_add_u32 v5, v12, 3, s%d" % (sST + 2)); e("v_lshlrev_b32 v12, 2, v12")
    e("s_lshl_b32 s%d, s%d, 2" % (sST + 2, sB)); e("v_add_u32 v3, s%d, v%d" % (sST + 2, vLB))
    e("s_lshl_b32 s%d, s%d, 6" % (sST + 2, sB)); e("v_and_b32 v13, 48, v%d" % vL); e("v_add3_u32 v13, v13, s%d, v%d" % (sST + 2, vLB))
    e("s_lshl_b32 s%d, s%d, 8" % (sST + 3, sB)); e("s_add_u32 s%d, s%d, s2" % (sST + 3, sST + 3))
    e("s_mul_i32 s%d, s%d, 1152" % (sST + 3, sST + 3)); e("s_add_u32 s%d, s%d, %d" % (sST + 3, sST + 3, WS_H1))
    e("s_lshl_b32 s%d, s%d, 4" % (sST + 4, sB)); e("s_add_u32 s%d, s%d, s%d" % (sST + 4, sST + 4, sH))
    e("s_mul_i32 s%d, s%d, %d" % (sST + 4, sST + 4, 16 * 1152)); e("s_add_u32 s%d, s%d, %d" % (sST + 4, sST + 4, WS_H1))
    e("s_bfe_u32 s%d, s%d, 0x10002" % (sST + 5, sS)); e("s_lshl_b32 s%d, s%d, 2" % (sST + 5, sST + 5))
    e("s_add_u32 s%d, s%d, s%d" % (sST + 5, sST + 5, sST + 4))
    e("s_and_b32 s%d, s%d, 7" % (sST + 6, sS)); e("s_lshl_b32 s%d, s%d, 7" % (sST + 6, sST + 6))
    e("s_add_u32 s%d, s%d, s%d" % (sST + 4, sST + 4, sST + 6))
    lds_wait(3, O_CNTM, 1, csleep)
    lds_wait(3, O_CNTM, 3, 0)
    for c in range(3): e("ds_read_b64 %s, v5 offset:%d" % (vr(a + 2 * c, 2), c * 1056 + 1024))
    for c in range(3): e("ds_read_b128 %s, v4 offset:%d" % (vr(a + 8 + 4 * c, 4), c * 1056))
    e("s_waitcnt lgkmcnt(3)")
    e("v_max3_f32 v6, v%d, v%d, v%d" % (a, a + 2, a + 4))
    for c in range(3): e("v_sub_f32 v%d, v%d, v6" % (a + 2 * c, a + 2 * c))
    for c in range(3): e("v_mul_f32 v%d, s%d, v%d" % (a + 2 * c, sLOG2E, a + 2 * c))
    for c in range(3): e("v_exp_f32 v%d, v%d" % (a + 2 * c, a + 2 * c))
    e("s_nop 0")
    e("v_mul_f32 v14, v%d, v%d" % (a, a + 1))
    e("v_fmac_f32 v14, v%d, v%d" % (a + 2, a + 3)); e("v_fmac_f32 v14, v%d, v%d" % (a + 4, a + 5))
    e("v_rcp_f32 v15, v14"); e("v_log_f32 v14, v14")
    e("s_waitcnt lgkmcnt(0)")
    for d in range(4): e("v_mul_f32 v%d, v%d, v%d" % (a + 8 + d, a + 8 + d, a))
    e("v_fmac_f32 v14, s%d, v6" % sLOG2E)
    for d in range(4): e("v_fmac_f32 v%d, v%d, v%d" % (a + 8 + d, a + 12 + d, a + 2))
    for d in range(4): e("v_fmac_f32 v%d, v%d, v%d" % (a + 8 + d, a + 16 + d, a + 4))
    for d in range(4): e("v_mul_f32 v%d, v%d, v15" % (a + 8 + d, a + 8 + d))
    e("buffer_store_dwordx4 %s, v7, s[%d:%d], s%d offen sc1" % (vr(a + 8, 4), sWSD, sWSD + 3, sST + 3))
    e("s_mov_b32 exec_lo, 1"); e("s_mov_b32 exec_hi, 1")
    e("buffer_store_dword v14, v12, s[%d:%d], s%d offen offset:1024 sc1" % (sWSD, sWSD + 3, sST + 3))
    e("s_mov_b64 exec, -1")
    if stamps:
        l = lab("s"); e("s_cmp_eq_u32 s%d, 0" % sB); e("s_cbranch_scc1 %s" % l); stamp(4); e("%s:" % l)
    a = rW + 24
    e("L_h1spin:")
    e("buffer_load_dwordx4 %s, v%d, s[%d:%d], s%d offen sc1" % (vr(a, 4), vAH1, sWSD, sWSD + 3, sST + 4))
    e("buffer_load_dwordx4 %s, v%d, s[%d:%d], s%d offen offset:16 sc1" % (vr(a + 4, 4), vAH1, sWSD, sWSD + 3, sST + 4))
    e("buffer_load_dword v%d, v%d, s[%d:%d], s%d offen offset:1024 sc1" % (a + 8, vAH1L, sWSD, sWSD + 3, sST + 5))
    e("s_waitcnt vmcnt(0)")
    e("v_max3_u32 v15, v%d, v%d, v%d" % (a, a + 1, a + 2))
    e("v_max_f32_dpp v14, v%d, v%d row_ror:8 row_mask:0xf bank_mask:0xf" % (a + 8, a + 8))
    e("v_max3_u32 v15, v15, v%d, v%d" % (a + 3, a + 4))
    e("v_max3_u32 v15, v15, v%d, v%d" % (a + 5, a + 6))
    e("v_max_f32_dpp v14, v14, v14 row_ror:4 row_mask:0xf bank_mask:0xf")
    e("v_max3_u32 v15, v15, v%d, v%d" % (a + 7, a + 8))
    e("v_cmp_eq_u32 vcc, -1, v15")
    e("v_max_f32_dpp v14, v14, v14 row_ror:2 row_mask:0xf bank_mask:0xf")
    e("s_branch L_h1ok" if diag & 8 else "s_cbranch_vccz L_h1ok")
    bound(); slp(gsleep); e("s_branch L_h1spin")
    e("L_h1ok:")
    e("s_nop 0")
    e("v_max_f32_dpp v14, v14, v14 row_ror:1 row_mask:0xf bank_mask:0xf")
    e("v_sub_f32 v14, v%d, v14" % (a + 8)); e("v_exp_f32 v14, v14"); e("s_nop 0")
    for i in range(8): e("v_mul_f32 v%d, v%d, v14" % (a + i, a + i))
    for r in (8, 4, 2, 1):
        e("v_add_f32_dpp v14, v14, v14 row_ror:%d row_mask:0xf bank_mask:0xf" % r)
        for i in range(8): e("v_add_f32_dpp v%d, v%d, v%d row_ror:%d row_mask:0xf bank_mask:0xf" % (a + i, a + i, a + i, r))
        if r == 1: pass
    e("v_rcp_f32 v14, v14"); e("s_nop 0")
    for i in range(8): e("v_mul_f32 v%d, v%d, v14" % (a + i, a + i))
    for p in range(4): e("v_cvt_pk_bf16_f32 v%d, v%d, v%d" % (a + 12 + p, a + 2 * p, a + 2 * p + 1))
    e("s_mov_b32 exec_lo, 0x00010001"); e("s_mov_b32 exec_hi, 0x00010001")
    e("ds_write_b128 v13, %s offset:%d" % (vr(a + 12, 4), O_OP))
    e("ds_write_b32 v3, v1 offset:%d" % O_OPR)
    e("s_mov_b64 exec, -1")
    e("s_add_u32 s%d, s%d, 1" % (sB, sB))
    if stamps:
        l = lab("s"); e("s_cmp_eq_u32 s%d, 2" % sB); e("s_cbranch_scc1 %s" % l); stamp(3); e("%s:" % l)
    e("s_cmp_lt_u32 s%d, 2" % sB); e("s_cbranch_scc1 L_svc_branch")
    stamp(5); stamp_flush()
    e("s_endpgm")

    nv = NV + (8 if stamps else 0)
    e('.section .rodata,"a"\n.p2align 6\n.amdhsa_kernel %s_kernel' % KN)
    e("  .amdhsa_next_free_vgpr %d\n  .amdhsa_next_free_sgpr 102\n  .amdhsa_accum_offset %d" % (nv, nv))
    e("  .amdhsa_group_segment_fixed_size 0\n  .amdhsa_kernarg_size 104\n  .amdhsa_user_sgpr_count 2\n  .amdhsa_user_sgpr_kernarg_segment_ptr 1\n  .amdhsa_system_sgpr_workgroup_id_x 1\n  .amdhsa_float_denorm_mode_32 3\n.end_amdhsa_kernel")
    return "\n".join(("    " + x if x and not x.endswith(":") and not x.startswith((";", ".", " ")) else x) for x in L) + "\n"

if __name__ == "__main__":
    out = sys.argv[1]
    kw = {}
    for a in sys.argv[2:]:
        k, v = a.split("=")
        kw[k] = v.replace("+", " ") if k.endswith("pol") else int(v)
    t = gen(**kw)
    open(out, "w").write(t)
    for p in hazard.check(t): print("HAZARD", p)
```

```python
import sys, os
sys.path.insert(0, os.path.dirname(os.path.abspath(__file__)))
import hazard
KN = "concat_heads__sliding_block_cached__gqa_block_cached__decode"
HEADER = open(os.path.join(os.path.dirname(os.path.abspath(__file__)), "header.txt")).read()

def gen(stamps=0, D=3, NTS=9, P0=0, barw=8, phaseA=384, phaseB=640, rot=1, nstatB=59, prio=1,
        csleep=1, gsleep=1, bdelay=40, adefer=60, pdefer=0, woearly=0, pipe2=1, pd2=12, pol="nt", diagspin=0, clr0=1):
    L = []
    def e(s=""):
        for x in s.split("\n"): L.append(x)
    def c(s): e("; " + s)
    NT_A, NT_B = 8, 64
    NT = NT_A + NT_B
    RING = NTS * 16384
    LB = RING
    O_LANDED, O_TOTAL, O_NEXT, O_CNTQ, O_CNTM, O_QRDY, O_OPR = 0, 4, 16, 32, 36, 44, 48
    O_OP = 64
    O_QB = 192
    O_SCR = 1216
    LDS_BYTES = RING + O_SCR + 6400
    WS_QX, WS_NONCE, WS_CTR, WS_H1 = 0, 0x10000, 0x11000, 0x20000
    WS_H2 = WS_H1 + 512 * 1024
    WS_SIZE = WS_H2 + 512 * 1152
    TAGINC = 0x9e3779b9
    dyn = nstatB < NT_B
    NSTAT = NT_A + nstatB
    NDYN = 16 * (NT_B - nstatB)
    LOG2E, SCALE = 0x3fb8aa3b, 0x3db504f3
    NRED, REDA = 36, 64
    sW, sH, sS, sWO, sBOUND, sCST, sCCNT = 3, 30, 31, 32, 33, 34, 35
    sKD, sVD = 36, 40
    sEND, sWI, sRET2 = 36, 37, 38
    sPK0, sPK1, sPK2, sUP = 40, 41, 42, 43
    sOFF, sOFF2, sLIN, sBASE, sMASK, sSLOT, sTI, sFREE, sTMP, sTMP2 = 44, 45, 46, 47, 48, 49, 51, 52, 53, 54
    sST = 44
    sTAG = 55
    sWSD, sXD, sQD, sOD, sOUTD = 56, 60, 64, 68, 72
    sCTR, sTK, sPH = 60, 62, 64
    sM1, sM2, sM3, sMG, sAL, sRET = 76, 78, 80, 82, 84, 86
    sRJ, sH2 = 88, 89
    sT, sSL, sNEED, sLAND, sB, sC = 90, 91, 92, 93, 94, 95
    sLOG2E, sSCALE, sPLO, sPHI = 96, 97, 98, 99
    vL = 0
    vQ, vK, vV, vO, vS, vP, vRA, vRB = 8, 24, 56, 88, 120, 128, 132, 164
    vAK0, vAV0, vAK, vAV = 196, 197, 198, 202
    vM, vMC, vLS, vPM = 210, 211, 212, 213
    vT = 217
    vLB, vX, vAWO, vAH2, vAMD, vAML, vANX = 232, 233, 234, 235, 236, 237, 238
    NV = 240
    def stamp(idx):
        if stamps:
            e("s_memrealtime s[100:101]"); e("s_waitcnt lgkmcnt(0)")
            e("v_writelane_b32 v%d, s100, %d" % (NV, 2 * idx)); e("v_writelane_b32 v%d, s101, %d" % (NV, 2 * idx + 1))
    def stamp_flush():
        if stamps:
            e("s_add_u32 s44, s28, 0x10000000"); e("s_addc_u32 s45, s29, 0")
            e("s_lshl_b32 s46, s2, 9"); e("s_lshl_b32 s47, s%d, 6" % sW); e("s_add_u32 s46, s46, s47")
            e("v_lshl_add_u32 v1, v%d, 2, s46" % vL)
            e("s_mov_b64 exec, 0xffff")
            e("global_store_dword v1, v%d, s[44:45]" % NV)
            e("s_mov_b64 exec, -1")
    uid = [0]
    def lab(n):
        uid[0] += 1; return "L_%s_%d" % (n, uid[0])
    def bound():
        e("s_sub_u32 s%d, s%d, 1" % (sBOUND, sBOUND)); e("s_cbranch_scc1 L_end")
    def srd(d, p, n):
        e("s_mov_b32 s%d, s%d" % (d, p)); e("s_mov_b32 s%d, s%d" % (d + 1, p + 1))
        e("s_mov_b32 s%d, %s" % (d + 2, n)); e("s_mov_b32 s%d, 0x20000" % (d + 3))
    def vr(b, n): return "v[%d:%d]" % (b, b + n - 1)
    def call(l, r=sRET): e("s_call_b64 s[%d:%d], %s" % (r, r + 1, l))
    def ret(r=sRET): e("s_setpc_b64 s[%d:%d]" % (r, r + 1))
    def slp(n):
        if n: e("s_sleep %d" % n)
    def lds_wait(addr_v, off, val, n_sleep, tmp=sST + 8, dst=1, cmp="ge_u32"):
        sp = lab("w"); ok = lab("ok")
        e("%s:" % sp)
        e("ds_read_b32 v%d, v%d offset:%d" % (dst, addr_v, off))
        e("s_waitcnt lgkmcnt(0)")
        e("v_readfirstlane_b32 s%d, v%d" % (tmp, dst))
        e("s_cmp_%s s%d, %d" % (cmp, tmp, val)); e("s_cbranch_scc1 %s" % ok)
        bound(); slp(n_sleep); e("s_branch %s" % sp)
        e("%s:" % ok)
    def packsel():
        e("s_mov_b32 s%d, 0x07060503" % sPK0); e("s_mov_b32 s%d, 0x06050302" % sPK1); e("s_mov_b32 s%d, 0x05030201" % sPK2)
    def pack4(dst, src):
        e("v_perm_b32 v%d, v%d, v%d, s%d" % (dst, src, src + 1, sPK0))
        e("v_perm_b32 v%d, v%d, v%d, s%d" % (dst + 1, src + 1, src + 2, sPK1))
        e("v_perm_b32 v%d, v%d, v%d, s%d" % (dst + 2, src + 2, src + 3, sPK2))

    e(HEADER.rstrip())
    e("; @launch grid=(256,1,1) block=(320,1,1) lds=%d" % LDS_BYTES)
    e('.amdgcn_target "amdgcn-amd-amdhsa--gfx950"')
    e(".text\n.globl %s_kernel\n.p2align 8\n.type %s_kernel,@function\n%s_kernel:" % (KN, KN, KN))
    e("s_cmp_ge_u32 s2, 256")
    e("s_cbranch_scc1 L_end")
    e("s_load_dwordx16 s[4:19], s[0:1], 0")
    e("s_load_dwordx8 s[20:27], s[0:1], 64")
    e("s_load_dwordx2 s[28:29], s[0:1], 96")
    e("v_lshrrev_b32 v1, 6, v0")
    e("v_and_b32 v%d, 63, v0" % vL)
    e("v_readfirstlane_b32 s%d, v1" % sW)
    e("s_lshr_b32 s%d, s2, 4" % sH)
    e("s_and_b32 s%d, s2, 15" % sS)
    e("s_mov_b32 s%d, 0x200000" % sBOUND)
    if diagspin: e("s_memrealtime s[98:99]")
    e("v_mov_b32 v%d, %d" % (vLB, LB))
    if stamps:
        e("v_mov_b32 v%d, 0" % NV); e("v_mov_b32 v241, 0"); e("v_mov_b32 v242, 0"); e("s_waitcnt lgkmcnt(0)"); stamp(0)
    e("s_cmp_eq_u32 s%d, 1" % sW)
    e("s_cbranch_scc1 L_loader")
    e("s_cmp_eq_u32 s%d, 4" % sW)
    e("s_cbranch_scc1 L_service")

    c("==== consumers.  q-projection block of this workgroup: 64 columns (s&7) x 288 rows (s>>3), 96 rows per wave")
    e("s_sub_u32 s%d, s%d, 1" % (sC, sW)); e("s_cselect_b32 s%d, 0, s%d" % (sC, sC))
    rW, rX, rACC = 24, 72, 80
    e("v_lshrrev_b32 v1, 3, v%d" % vL)
    e("v_and_b32 v2, 7, v%d" % vL)
    e("v_mul_u32_u24 v3, 24, v1")
    e("v_mul_u32_u24 v4, %d, v1" % (12 * 8192))
    e("v_lshl_add_u32 v4, v2, 4, v4")
    e("s_lshr_b32 s%d, s%d, 3" % (sST, sS))
    e("s_mul_i32 s%d, s%d, 288" % (sST + 1, sST))
    e("s_mul_i32 s%d, s%d, 96" % (sST + 2, sC))
    e("s_add_u32 s%d, s%d, s%d" % (sST + 1, sST + 1, sST + 2))
    e("s_lshl_b32 s%d, s%d, 1" % (sST + 2, sST + 1))
    e("s_lshl_b32 s%d, s%d, 13" % (sST + 3, sST + 1))
    e("s_lshl_b32 s%d, s%d, 9" % (sST + 4, sH))
    e("s_and_b32 s%d, s%d, 3" % (sST + 5, sS))
    e("s_lshl_b32 s%d, s%d, 7" % (sST + 5, sST + 5))
    e("s_add_u32 s%d, s%d, s%d" % (sST + 3, sST + 3, sST + 4))
    e("s_add_u32 s%d, s%d, s%d" % (sST + 3, sST + 3, sST + 5))
    e("s_mov_b32 s%d, 1152" % (sXD + 2)); e("s_mov_b32 s%d, 0x20000" % (sXD + 3))
    e("s_mov_b32 s%d, 4718592" % (sQD + 2)); e("s_mov_b32 s%d, 0x20000" % (sQD + 3))
    e("s_bitcmp1_b32 s%d, 2" % sS)
    e("s_waitcnt lgkmcnt(0)")
    e("s_cselect_b32 s%d, s20, s10" % sQD); e("s_cselect_b32 s%d, s21, s11" % (sQD + 1))
    e("s_cselect_b32 s%d, s14, s4" % sXD); e("s_cselect_b32 s%d, s15, s5" % (sXD + 1))
    for i in range(12):
        e("buffer_load_dwordx4 %s, v4, s[%d:%d], s%d offen %s" % (vr(rW + 4 * i, 4), sQD, sQD + 3, sST + 3, pol))
        if i < 11: e("s_add_u32 s%d, s%d, 8192" % (sST + 3, sST + 3))
        if i == 1:
            for k in range(3):
                e("buffer_load_dwordx2 %s, v3, s[%d:%d], s%d offen offset:%d" % (vr(rX + 2 * k, 2), sXD, sXD + 3, sST + 2, 8 * k))
    e("s_load_dword s%d, s[28:29], %d" % (sTAG, WS_NONCE))
    srd(sWSD, 28, WS_SIZE)
    c("own projection record (branch 0): index = sc*128 + h*8 + (s&7)")
    e("s_lshl_b32 s%d, s%d, 7" % (sST + 6, sST))
    e("s_lshl_b32 s%d, s%d, 3" % (sST + 7, sH)); e("s_and_b32 s%d, s%d, 7" % (sST + 8, sS)); e("s_add_u32 s%d, s%d, s%d" % (sST + 7, sST + 7, sST + 8))
    e("s_add_u32 s%d, s%d, s%d" % (sST + 6, sST + 6, sST + 7))
    e("s_mul_i32 s%d, s%d, 1152" % (sH2, sST + 6)); e("s_add_u32 s%d, s%d, %d" % (sH2, sH2, WS_H2))
    e("s_mov_b32 s%d, 0xcccccccc" % sM1); e("s_mov_b32 s%d, 0xcccccccc" % (sM1 + 1))
    e("s_mov_b32 s%d, 0xf0f0f0f0" % sM2); e("s_mov_b32 s%d, 0xf0f0f0f0" % (sM2 + 1))
    e("s_mov_b32 s%d, 0xff00ff00" % sM3); e("s_mov_b32 s%d, 0xff00ff00" % (sM3 + 1))
    e("s_mov_b32 s%d, 0xffff0000" % sMG); e("s_mov_b32 s%d, 0xffff0000" % (sMG + 1))
    e("s_mov_b32 s%d, %#x" % (sLOG2E, LOG2E)); e("s_mov_b32 s%d, %#x" % (sSCALE, SCALE))
    e("s_mov_b32 s%d, 0x05040100" % sPLO); e("s_mov_b32 s%d, 0x07060302" % sPHI)
    packsel()
    e("v_and_b32 v5, 15, v%d" % vL)
    e("v_lshrrev_b32 v6, 4, v%d" % vL)
    c("K fragment address: row m, 16-byte chunk slab ^ ((m&7)<<1)")
    e("v_and_b32 v7, 7, v5"); e("v_lshlrev_b32 v7, 1, v7"); e("v_xor_b32 v7, v7, v6")
    e("v_lshlrev_b32 v7, 4, v7"); e("v_lshl_add_u32 v%d, v5, 8, v7" % vAK0)
    c("V transpose-read address: row = 4g + (n>>2); row*256 + (row&7)*32 + (n&3)*8 + 8192")
    e("v_lshrrev_b32 v7, 2, v5"); e("v_lshl_add_u32 v7, v6, 2, v7")
    e("v_and_b32 v%d, 7, v7" % vT); e("v_lshlrev_b32 v%d, 5, v%d" % (vT, vT)); e("v_lshl_add_u32 v7, v7, 8, v%d" % vT)
    e("v_and_b32 v%d, 3, v5" % vT); e("v_lshl_add_u32 v7, v%d, 3, v7" % vT); e("v_add_u32 v%d, 0x2000, v7" % vAV0)
    c("P placement masks: lane column n = (j<<1 | head) keeps key slot j of its slab")
    e("v_mov_b32 v7, 0xffff"); e("v_mov_b32 v%d, 0xffff0000" % vT)
    e("v_cndmask_b32 v7, v7, v%d, s[%d:%d]" % (vT, sM1, sM1 + 1))
    e("v_lshrrev_b32 v%d, 2, v5" % vT)
    for p in range(4):
        e("v_cmp_eq_u32 vcc, %d, v%d" % (p, vT)); e("s_nop 1"); e("v_cndmask_b32 v%d, 0, v7, vcc" % (vPM + p))
    c("wo block of this workgroup: 32 rows x 288 columns; 16-byte column chunks per wave 16/16/4 or 4/16/16")
    e("s_lshl_b32 s%d, s%d, 4" % (sCST, sC))
    e("s_cmp_eq_u32 s%d, 2" % sC); e("s_cselect_b32 s%d, 4, 16" % sCCNT)
    e("s_cmp_eq_u32 s%d, 0" % sST); e("s_cbranch_scc1 L_sc0")
    e("s_sub_u32 s%d, s%d, 12" % (sCST, sCST))
    e("s_cmp_eq_u32 s%d, 0" % sC); e("s_cselect_b32 s%d, 4, 16" % sCCNT); e("s_cselect_b32 s%d, 0, s%d" % (sCST, sCST))
    e("L_sc0:")
    e("s_sub_u32 s%d, s%d, 1" % (sST + 8, sCCNT))
    e("v_min_u32 v7, s%d, v5" % (sST + 8))
    e("v_mul_u32_u24 v%d, %d, v6" % (vT, 8 * 1152))
    e("v_lshl_add_u32 v%d, v7, 4, v%d" % (vAWO, vT))
    e("v_lshlrev_b32 v7, 5, v5"); e("v_lshl_add_u32 v%d, v6, 4, v7" % vAH2)
    e("s_mul_i32 s%d, s%d, %d" % (sST + 8, sST + 7, 32 * 1152))
    e("s_mul_i32 s%d, s%d, 576" % (sST + 9, sST)); e("s_add_u32 s%d, s%d, s%d" % (sST + 8, sST + 8, sST + 9))
    e("s_lshl_b32 s%d, s%d, 4" % (sST + 9, sCST)); e("s_add_u32 s%d, s%d, s%d" % (sWO, sST + 8, sST + 9))
    c("partial-result dump addresses")
    e("s_mul_i32 s%d, s%d, 1056" % (sST + 8, sC)); e("s_add_u32 s%d, s%d, %d" % (sST + 8, sST + 8, LB + O_SCR))
    e("v_lshrrev_b32 v7, 5, v%d" % vL); e("v_lshlrev_b32 v7, 9, v7")
    e("v_and_b32 v%d, 31, v%d" % (vT, vL)); e("v_lshl_add_u32 v7, v%d, 2, v7" % vT); e("v_add_u32 v%d, s%d, v7" % (vAMD, sST + 8))
    e("v_and_b32 v7, 1, v%d" % vL); e("v_lshlrev_b32 v7, 3, v7"); e("v_add_u32 v%d, s%d, v7" % (vAML, sST + 8))
    e("s_lshl_b32 s%d, s%d, 2" % (sST + 8, sC)); e("v_add_u32 v%d, s%d, v%d" % (vANX, sST + 8, vLB))
    c("Q fragment address: head (n&1)*256 + slab*16")
    e("v_and_b32 v7, 1, v%d" % vL); e("v_lshlrev_b32 v7, 8, v7")
    e("v_lshl_add_u32 v7, v6, 4, v7"); e("v_add_u32 v%d, v7, v%d" % (vX, vLB))
    for k in range(8): e("v_mov_b32 v%d, 0" % (rACC + k))
    if barw < 13: e("s_waitcnt vmcnt(%d)" % barw)
    e("s_barrier")
    for pr in range(6):
        e("s_waitcnt vmcnt(%d)" % (10 - 2 * pr))
        for d in range(4):
            lo, hi = rW + 8 * pr + d, rW + 8 * pr + 4 + d
            e("v_perm_b32 v%d, v%d, v%d, s%d" % (vT + 2 * d, hi, lo, sPLO))
            e("v_perm_b32 v%d, v%d, v%d, s%d" % (vT + 2 * d + 1, hi, lo, sPHI))
        for k in range(8):
            e("v_dot2_f32_bf16 v%d, v%d, v%d, v%d" % (rACC + k, vT + k, rX + pr, rACC + k))
    e("s_lshl_b32 s%d, s%d, 11" % (sST + 8, sC)); e("s_add_u32 s%d, s%d, %d" % (sST + 8, sST + 8, LB + O_SCR))
    e("v_lshl_add_u32 v7, v%d, 5, s%d" % (vL, sST + 8))
    e("v_mov_b32 v2, 1")
    e("ds_write_b128 v7, %s" % vr(rACC, 4)); e("ds_write_b128 v7, %s offset:16" % vr(rACC + 4, 4))
    e("s_mov_b64 exec, 1"); e("ds_add_u32 v%d, v2 offset:%d" % (vLB, O_CNTQ)); e("s_mov_b64 exec, -1")
    stamp(1)
    lds_wait(vLB, O_QRDY, 1, csleep)
    e("s_add_u32 s%d, s%d, %#x" % (sTAG, sTAG, TAGINC))
    stamp(2)
    e("s_mov_b32 s%d, s%d" % (sT, sC)); e("s_lshl_b32 s%d, s%d, 14" % (sSL, sC)); e("s_mov_b32 s%d, 0" % sLAND)
    e("s_mov_b32 s%d, 0" % sB); e("s_mov_b32 s%d, 0" % sWI)
    call("L_begin")
    e("s_mov_b32 s%d, %d" % (sEND, NT_A)); call("L_tiles")
    call("L_dump")
    stamp(3)
    e("s_mov_b32 s%d, 1" % sB)
    lds_wait(vLB, O_QRDY, 2, csleep)
    call("L_begin")
    e("s_mov_b32 s%d, 0x7fffffff" % sEND); call("L_tiles")
    stamp(4); call("L_dump"); stamp(5)
    if woearly:
        e("s_cmp_lg_u32 s%d, 0" % sWI); e("s_cbranch_scc1 L_wodone")
    call("L_woload", sRET2)
    e("L_wodone:")
    def woperm(raw):
        for ee in range(8):
            for p in range(4):
                e("v_perm_b32 v%d, v%d, v%d, s%d" % (vO + 4 * ee + p, raw + 4 * (2 * p + 1) + ee // 2, raw + 4 * (2 * p) + ee // 2, sPHI if ee & 1 else sPLO))
    e("s_waitcnt vmcnt(8)")
    woperm(vRA)
    e("s_mov_b32 s%d, 0" % sB)
    call("L_proj")
    e("s_waitcnt vmcnt(1)")
    woperm(vRB)
    e("s_mov_b32 s%d, 1" % sB)
    call("L_proj")
    stamp(6); stamp_flush()
    e("s_endpgm")

    c("---- start a branch: Q fragments, empty running state")
    e("L_begin:")
    e("s_lshl_b32 s%d, s%d, 9" % (sST + 8, sB))
    e("v_add_u32 v1, s%d, v%d" % (sST + 8, vX))
    for k in range(4): e("ds_read_b128 %s, v1 offset:%d" % (vr(vQ + 4 * k, 4), O_QB + k * 64))
    e("v_mov_b32 v%d, 0xff61b1e6" % vM)
    e("v_mov_b32 v%d, 0" % vMC); e("v_mov_b32 v%d, 0" % vLS)
    for i in range(32): e("v_mov_b32 v%d, 0" % (vO + i))
    e("s_waitcnt lgkmcnt(0)")
    ret()

    c("---- tile loop: ring tiles t, t+3, ... while t < end and t < total")
    e("L_tiles:")
    e("s_cmp_ge_u32 s%d, s%d" % (sT, sEND)); e("s_cbranch_scc1 L_tiles_ret")
    e("L_tile:")
    e("s_lshl_b32 s%d, s%d, 1" % (sNEED, sT)); e("s_add_u32 s%d, s%d, 1" % (sNEED, sNEED))
    e("v_add_u32 v%d, s%d, v%d" % (vAK, sSL, vAK0))
    e("v_add_u32 v%d, s%d, v%d" % (vAV, sSL, vAV0))
    for k in range(1, 4): e("v_xor_b32 v%d, %d, v%d" % (vAK + k, k << 6, vAK))
    for cg in range(1, 8): e("v_xor_b32 v%d, %d, v%d" % (vAV + cg, cg << 5, vAV))
    e("s_cmp_ge_u32 s%d, s%d" % (sLAND, sNEED)); e("s_cbranch_scc1 L_kok")
    e("L_kspin:")
    e("ds_read_b64 v[2:3], v%d offset:%d" % (vLB, O_LANDED))
    e("s_waitcnt lgkmcnt(0)")
    e("v_readfirstlane_b32 s%d, v2" % sLAND)
    e("v_readfirstlane_b32 s%d, v3" % (sST + 9))
    e("s_cmp_ge_u32 s%d, s%d" % (sLAND, sNEED)); e("s_cbranch_scc1 L_kok")
    e("s_cmp_ge_u32 s%d, s%d" % (sT, sST + 9)); e("s_cbranch_scc1 L_tiles_ret")
    if woearly:
        e("s_and_b32 s%d, s%d, 0x80000000" % (sST + 9, sST + 9)); e("s_or_b32 s%d, s%d, s%d" % (sST + 9, sST + 9, sWI))
        e("s_cbranch_scc1 L_knowo")
        call("L_woload", sRET2)
        e("L_knowo:")
    bound(); slp(csleep); e("s_branch L_kspin")
    e("L_kok:")
    def vreads():
        for cg in range(8):
            for blk in range(2):
                e("ds_read_b64_tr_b16 %s, v%d offset:%d" % (vr(vV + 4 * cg + 2 * blk, 2), vAV + cg, blk * 4096))
    for k in range(4):
        for blk in range(2):
            e("ds_read_b128 %s, v%d offset:%d" % (vr(vK + 16 * blk + 4 * k, 4), vAK + k, blk * 4096))
    e("ds_read_b32 v2, v%d offset:%d" % (vLB, O_LANDED))
    e("s_add_u32 s%d, s%d, 1" % (sNEED, sNEED))
    e("s_add_u32 s%d, s%d, %d" % (sSL, sSL, 3 * 16384))
    e("s_cmp_ge_u32 s%d, %d" % (sSL, RING)); e("s_cselect_b32 s%d, %d, 0" % (sST + 8, RING)); e("s_sub_u32 s%d, s%d, s%d" % (sSL, sSL, sST + 8))
    e("s_add_u32 s%d, s%d, 3" % (sT, sT))
    e("v_mov_b32 v4, s%d" % sT)
    for k in range(4):
        e("s_waitcnt lgkmcnt(%d)" % (7 - 2 * k))
        for blk in range(2):
            e("v_mfma_f32_16x16x32_bf16 %s, %s, %s, %s" % (vr(vS + 4 * blk, 4), vr(vK + 16 * blk + 4 * k, 4), vr(vQ + 4 * k, 4), "0" if k == 0 else vr(vS + 4 * blk, 4)))
    e("s_waitcnt lgkmcnt(0)")
    e("v_readfirstlane_b32 s%d, v2" % sLAND)
    e("s_nop 2")
    e("s_cmp_ge_u32 s%d, s%d" % (sLAND, sNEED)); e("s_cbranch_scc0 L_soft")
    vreads()
    e("L_soft:")
    t = vT
    c("one score per lane: 32 keys x 2 heads")
    e("v_cndmask_b32 v%d, v%d, v%d, s[%d:%d]" % (t, vS, vS + 1, sM1, sM1 + 1))
    e("v_cndmask_b32 v%d, v%d, v%d, s[%d:%d]" % (t + 1, vS + 2, vS + 3, sM1, sM1 + 1))
    e("v_cndmask_b32 v%d, v%d, v%d, s[%d:%d]" % (t + 2, vS + 4, vS + 5, sM1, sM1 + 1))
    e("v_cndmask_b32 v%d, v%d, v%d, s[%d:%d]" % (t + 3, vS + 6, vS + 7, sM1, sM1 + 1))
    e("v_cndmask_b32 v%d, v%d, v%d, s[%d:%d]" % (t, t, t + 1, sM2, sM2 + 1))
    e("v_cndmask_b32 v%d, v%d, v%d, s[%d:%d]" % (t + 2, t + 2, t + 3, sM2, sM2 + 1))
    e("v_cndmask_b32 v%d, v%d, v%d, s[%d:%d]" % (t, t, t + 2, sM3, sM3 + 1))
    c("bf16(bf16(q.k) * Dh^-0.5), as the reference rounds them")
    e("v_cvt_pk_bf16_f32 v%d, v%d, v%d" % (t, t, t))
    e("v_and_b32 v%d, 0xffff0000, v%d" % (t, t))
    e("v_mul_f32 v%d, s%d, v%d" % (t, sSCALE, t))
    e("v_cvt_pk_bf16_f32 v%d, v%d, v%d" % (t, t, t))
    e("v_and_b32 v%d, 0xffff0000, v%d" % (t, t))
    e("v_cmp_gt_f32 vcc, v%d, v%d" % (t, vM))
    e("s_cbranch_vccnz L_newmax")
    e("L_maxok:")
    e("v_fma_f32 v%d, v%d, s%d, v%d" % (t, t, sLOG2E, vMC))
    e("v_exp_f32 v%d, v%d" % (t, t))
    e("s_cmp_ge_u32 s%d, s%d" % (sLAND, sNEED))
    e("v_add_f32 v%d, v%d, v%d" % (vLS, vLS, t))
    e("v_cvt_pk_bf16_f32 v%d, v%d, v%d" % (t, t, t))
    for p in range(4): e("v_and_b32 v%d, v%d, v%d" % (vP + p, t, vPM + p))
    e("s_cbranch_scc1 L_pv")
    e("L_vspin:")
    e("ds_read_b32 v2, v%d offset:%d" % (vLB, O_LANDED))
    e("s_waitcnt lgkmcnt(0)")
    e("v_readfirstlane_b32 s%d, v2" % sLAND)
    e("s_cmp_ge_u32 s%d, s%d" % (sLAND, sNEED)); e("s_cbranch_scc1 L_vok")
    bound(); e("s_branch L_vspin")
    e("L_vok:")
    vreads()
    e("L_pv:")
    for cg in range(8):
        e("s_waitcnt lgkmcnt(%d)" % (14 - 2 * cg))
        if cg == 7: e("ds_write_b32 v%d, v4 offset:%d" % (vANX, O_NEXT))
        e("v_mfma_f32_16x16x32_bf16 %s, %s, %s, %s" % (vr(vO + 4 * cg, 4), vr(vP, 4), vr(vV + 4 * cg, 4), vr(vO + 4 * cg, 4)))
    e("s_cmp_lt_u32 s%d, s%d" % (sT, sEND)); e("s_cbranch_scc1 L_tile")
    e("L_tiles_ret:")
    ret()
    c("the running max rose: online-softmax rescale of l and O")
    e("L_newmax:")
    e("v_max_f32 v%d, v%d, v%d" % (t + 1, t, vM))
    for r in (2, 4, 8):
        e("s_nop 1"); e("v_max_f32_dpp v%d, v%d, v%d row_ror:%d row_mask:0xf bank_mask:0xf" % (t + 1, t + 1, t + 1, r))
    for sw in ("16", "32"):
        e("v_mov_b32 v%d, v%d" % (t + 2, t + 1)); e("s_nop 1")
        e("v_permlane%s_swap_b32 v%d, v%d" % (sw, t + 1, t + 2)); e("v_max_f32 v%d, v%d, v%d" % (t + 1, t + 1, t + 2))
    e("v_sub_f32 v%d, v%d, v%d" % (t + 2, vM, t + 1))
    e("v_mul_f32 v%d, s%d, v%d" % (t + 2, sLOG2E, t + 2))
    e("v_exp_f32 v%d, v%d" % (t + 2, t + 2))
    e("v_mov_b32 v%d, v%d" % (vM, t + 1))
    e("v_mul_f32 v%d, s%d, v%d" % (vMC, sLOG2E, t + 1))
    e("v_readlane_b32 s%d, v%d, 0" % (sAL, t + 2)); e("v_readlane_b32 s%d, v%d, 1" % (sAL + 1, t + 2))
    e("v_sub_f32 v%d, 0, v%d" % (vMC, vMC))
    e("v_mul_f32 v%d, v%d, v%d" % (vLS, vLS, t + 2))
    for i in range(16): e("v_pk_mul_f32 %s, %s, s[%d:%d]" % (vr(vO + 2 * i, 2), vr(vO + 2 * i, 2), sAL, sAL + 1))
    e("s_branch L_maxok")

    c("---- hand this wave's partial (m, l, O) to the service wave through LDS")
    e("L_dump:")
    e("s_mul_i32 s%d, s%d, %d" % (sST + 8, sB, 3 * 1056))
    e("v_add_u32 v4, s%d, v%d" % (sST + 8, vAMD)); e("v_add_u32 v5, s%d, v%d" % (sST + 8, vAML))
    e("v_mov_b32 v6, v%d" % vM)
    e("v_add_f32_dpp v7, v%d, v%d row_ror:2 row_mask:0xf bank_mask:0xf" % (vLS, vLS))
    e("s_lshl_b32 s%d, s%d, 2" % (sST + 9, sB)); e("v_add_u32 v3, s%d, v%d" % (sST + 9, vLB))
    e("v_add_f32_dpp v7, v7, v7 row_ror:4 row_mask:0xf bank_mask:0xf")
    e("v_mov_b32 v2, 1")
    pk = ["v_pk_add_f32 %s, %s, %s" % (vr(vO + 4 * cg, 2), vr(vO + 4 * cg, 2), vr(vO + 4 * cg + 2, 2)) for cg in range(8)]
    e(pk[0]); e("v_add_f32_dpp v7, v7, v7 row_ror:8 row_mask:0xf bank_mask:0xf")
    e(pk[1]); e("v_mov_b32 v1, v7"); e(pk[2]); e(pk[3])
    e("v_permlane16_swap_b32 v7, v1"); e(pk[4]); e("v_add_f32 v7, v7, v1"); e(pk[5]); e("v_mov_b32 v1, v7"); e(pk[6]); e(pk[7])
    e("v_permlane32_swap_b32 v7, v1")
    for cg in range(8):
        e("v_permlane32_swap_b32 v%d, v%d" % (vO + 4 * cg, vO + 4 * cg + 1))
        if cg == 0: e("v_add_f32 v7, v7, v1")
        if cg == 1: e("ds_write_b64 v5, v[6:7] offset:1024")
    for cg in range(8): e("v_add_f32 v%d, v%d, v%d" % (vO + 4 * cg, vO + 4 * cg, vO + 4 * cg + 1))
    for c2 in range(4): e("v_permlane16_swap_b32 v%d, v%d" % (vO + 8 * c2, vO + 8 * c2 + 4))
    for c2 in range(4):
        e("v_add_f32 v%d, v%d, v%d" % (vO + 8 * c2, vO + 8 * c2, vO + 8 * c2 + 4))
        e("ds_write_b32 v4, v%d offset:%d" % (vO + 8 * c2, c2 * 128))
    e("s_mov_b64 exec, 1"); e("ds_add_u32 v3, v2 offset:%d" % O_CNTM); e("s_mov_b64 exec, -1")
    ret()

    c("---- wo blocks of both branches (raw rows)")
    e("L_woload:")
    e("s_mov_b32 s%d, 1" % sWI)
    e("s_add_u32 s%d, s%d, %d" % (sST + 8, sWO, 4 * 1152))
    for raw, p in ((vRA, 12), (vRB, 22)):
        srd(sOD, p, 4718592)
        for i in range(8):
            e("buffer_load_dwordx4 %s, v%d, s[%d:%d], s%d offen offset:%d %s" % (vr(raw + 4 * i, 4), vAWO, sOD, sOD + 3, sWO if i < 4 else sST + 8, (i % 4) * 1152, pol))
    ret(sRET2)

    c("---- project the combined 32 dims onto this wave's columns and publish the partial row")
    e("L_proj:")
    e("s_lshl_b32 s%d, s%d, 2" % (sST + 9, sB)); e("v_add_u32 v3, s%d, v%d" % (sST + 9, vLB))
    e("s_lshl_b32 s%d, s%d, 6" % (sST + 9, sB)); e("v_and_b32 v4, 48, v%d" % vL); e("v_add3_u32 v4, v4, s%d, v%d" % (sST + 9, vLB))
    e("s_mul_i32 s%d, s%d, %d" % (sST + 6, sB, 256 * 1152)); e("s_add_u32 s%d, s%d, s%d" % (sST + 6, sST + 6, sH2))
    e("s_lshl_b32 s%d, s%d, 5" % (sST + 9, sCST)); e("s_add_u32 s%d, s%d, s%d" % (sST + 6, sST + 6, sST + 9))
    e("s_bfm_b32 s%d, s%d, 0" % (sST + 7, sCCNT)); e("s_mul_i32 s%d, s%d, 0x10001" % (sST + 7, sST + 7))
    e("v_mov_b32 v%d, s%d" % (vK + 11, sTAG))
    e("L_pspin:")
    e("ds_read_b32 v1, v3 offset:%d" % O_OPR)
    e("ds_read_b128 %s, v4 offset:%d" % (vr(vK, 4), O_OP))
    e("s_waitcnt lgkmcnt(1)")
    e("v_readfirstlane_b32 s%d, v1" % (sST + 8))
    e("s_cmp_lg_u32 s%d, 0" % (sST + 8)); e("s_cbranch_scc1 L_pok")
    bound(); e("s_branch L_pspin")
    e("L_pok:")
    e("s_waitcnt lgkmcnt(0)")
    for ee in (0, 4, 1, 5, 2, 6, 3, 7):
        e("v_mfma_f32_16x16x32_bf16 %s, %s, %s, 0" % (vr(vV + 4 * ee, 4), vr(vK, 4), vr(vO + 4 * ee, 4)))
    e("s_nop 1")
    for r in range(4):
        e("v_cndmask_b32 v%d, v%d, v%d, s[%d:%d]" % (vK + 4 + r, vV + 4 * r, vV + 16 + 4 * r, sMG, sMG + 1))
        if r < 3: e("s_nop 0")
    pack4(vK + 8, vK + 4)
    e("s_mov_b32 exec_lo, s%d" % (sST + 7)); e("s_mov_b32 exec_hi, 0")
    e("buffer_store_dwordx4 %s, v%d, s[%d:%d], s%d offen sc1" % (vr(vK + 8, 4), vAH2, sWSD, sWSD + 3, sST + 6))
    e("s_mov_b64 exec, -1")
    ret()

    c("==== loader")
    e("L_loader:")
    if prio: e("s_setprio %d" % prio)
    e("v_lshrrev_b32 v1, 4, v%d" % vL)
    e("v_lshlrev_b32 v2, 1, v1")
    e("v_xor_b32 v2, v2, v%d" % vL)
    e("v_and_b32 v2, 15, v2")
    e("v_lshlrev_b32 v2, 4, v2")
    e("v_lshl_add_u32 v2, v1, 8, v2")
    e("v_xor_b32 v3, 0x80, v2")
    e("s_lshl_b32 s%d, s%d, 23" % (sBASE, sH))
    e("s_add_u32 s%d, s%d, 0x700000" % (sBASE, sBASE))
    e("s_mov_b32 s%d, 0xfffff" % sMASK)
    e("s_mul_i32 s%d, s%d, %d" % (sLIN, sH, phaseA * 1024))
    e("s_lshl_b32 s%d, s%d, 13" % (sTMP, sS))
    e("s_add_u32 s%d, s%d, s%d" % (sLIN, sLIN, sTMP))
    e("s_and_b32 s%d, s%d, s%d" % (sOFF, sLIN, sMASK))
    e("s_add_u32 s%d, s%d, s%d" % (sOFF, sOFF, sBASE))
    e("s_mul_i32 s%d, s%d, %d" % (sPH, sH, phaseB * 1024))
    e("s_mov_b32 s%d, 0" % sSLOT)
    e("s_mov_b32 s%d, 0" % sTI)
    e("s_mov_b32 s%d, %d" % (sFREE, NTS))
    e("s_lshl_b32 s%d, s%d, 8" % (sTMP, sH)); e("s_add_u32 s%d, s%d, %d" % (sTMP, sTMP, WS_CTR))
    e("s_waitcnt lgkmcnt(0)")
    srd(sKD, 6, "0x8000000"); srd(sVD, 8, "0x8000000")
    e("s_add_u32 s%d, s28, s%d" % (sCTR, sTMP)); e("s_addc_u32 s%d, s29, 0" % (sCTR + 1))
    e("s_load_dword s%d, s[28:29], %d" % (sTAG, WS_NONCE))
    def issue(d):
        e("s_mov_b32 m0, s%d" % sSLOT)
        e("s_add_u32 s%d, s%d, 4096" % (sOFF2, sOFF))
        for i in range(4):
            e("buffer_load_dwordx4 v%d, s[%d:%d], s%d offen offset:%d %s lds" % (2 + (i & 1), d, d + 3, sOFF, i * 1024, pol))
        e("s_add_u32 m0, s%d, 4096" % sSLOT)
        e("s_add_u32 s%d, s%d, 8192" % (sSLOT, sSLOT))
        for i in range(4):
            e("buffer_load_dwordx4 v%d, s[%d:%d], s%d offen offset:%d %s lds" % (2 + (i & 1), d, d + 3, sOFF2, i * 1024, pol))
        if d == sVD:
            e("s_cmp_eq_u32 s%d, %d" % (sSLOT, RING)); e("s_cselect_b32 s%d, 0, s%d" % (sSLOT, sSLOT))
    def req():
        e("s_mov_b32 s%d, 1" % sTK); e("s_atomic_add s%d, s[%d:%d], 0x0 glc" % (sTK, sCTR, sCTR + 1))
    def advance0():
        e("s_add_u32 s%d, s%d, 1" % (sTI, sTI))
        e("s_add_u32 s%d, s%d, 0x20000" % (sLIN, sLIN))
    def static_off():
        e("s_and_b32 s%d, s%d, s%d" % (sOFF, sLIN, sMASK))
        if rot:
            e("s_mul_i32 s%d, s%d, %d" % (sTMP2, sTI, rot << 13)); e("s_add_u32 s%d, s%d, s%d" % (sTMP2, sTMP2, sOFF))
            e("s_and_b32 s%d, s%d, 0x1e000" % (sTMP2, sTMP2))
            e("s_and_b32 s%d, s%d, 0xfffe1fff" % (sOFF, sOFF)); e("s_or_b32 s%d, s%d, s%d" % (sOFF, sOFF, sTMP2))
        e("s_add_u32 s%d, s%d, s%d" % (sOFF, sOFF, sBASE))
    for j in range(D):
        if j == P0: e("s_barrier")
        if j and j % 2 == 0: advance0(); static_off()
        issue(sKD if j % 2 == 0 else sVD)
    if P0 >= D: e("s_barrier")
    def step(isK):
        if isK: advance0()
        e("s_lshl_b32 s%d, s%d, 1" % (sTMP, sTI))
        e("s_add_i32 s%d, s%d, %d" % (sTMP, sTMP, (0 if isK else 1) - D + 1))
        e("v_mov_b32 v4, s%d" % sTMP)
        e("s_waitcnt vmcnt(%d)" % ((D - 1) * 8))
        if isK and stamps == 2:
            e("s_waitcnt lgkmcnt(0)")
            e("s_sub_u32 s%d, s%d, 1" % (sTMP2, sTI)); e("s_and_b32 m0, s%d, 63" % sTMP2)
            l = lab("tr"); l2 = lab("tr2")
            e("s_cmp_ge_u32 s%d, 64" % sTMP2); e("s_cbranch_scc1 %s" % l)
            e("v_writelane_b32 v241, s98, m0"); e("s_branch %s" % l2)
            e("%s:" % l); e("v_writelane_b32 v242, s98, m0"); e("%s:" % l2)
            e("s_memrealtime s[98:99]")
        e("ds_max_u32 v%d, v4 offset:%d" % (vLB, O_LANDED))
        if isK:
            c("the ring slots of tile t - %d must have been consumed" % NTS)
            e("s_cmp_lt_u32 s%d, s%d" % (sTI, sFREE)); e("s_cbranch_scc1 L_free")
            e("L_fspin:")
            e("ds_read_b96 v[8:10], v%d offset:%d" % (vLB, O_NEXT))
            e("s_waitcnt lgkmcnt(0)")
            e("v_min3_u32 v8, v8, v9, v10")
            e("s_nop 0")
            e("v_readfirstlane_b32 s%d, v8" % sFREE)
            e("s_add_u32 s%d, s%d, %d" % (sFREE, sFREE, NTS))
            e("s_cmp_lt_u32 s%d, s%d" % (sTI, sFREE)); e("s_cbranch_scc1 L_free")
            e("s_lshl_b32 s%d, s%d, 1" % (sTMP, sTI))
            e("v_mov_b32 v4, s%d" % sTMP)
            e("s_waitcnt vmcnt(0)")
            e("ds_max_u32 v%d, v4 offset:%d" % (vLB, O_LANDED))
            bound(); slp(1); e("s_branch L_fspin")
            e("L_free:")
            if dyn:
                e("s_cmp_lt_u32 s%d, %d" % (sTI, NSTAT - 1)); e("s_cbranch_scc1 L_stat")
                e("s_cmp_lt_u32 s%d, %d" % (sTI, NSTAT)); e("s_cbranch_scc1 L_first")
                c("last tiles of the head: taken from the head group's shared counter")
                e("s_waitcnt lgkmcnt(0)")
                e("s_cmp_ge_u32 s%d, %d" % (sTK, NDYN)); e("s_cbranch_scc1 L_ld_drain")
                e("s_lshl_b32 s%d, s%d, 13" % (sOFF, sTK))
                req()
                e("s_add_u32 s%d, s%d, s%d" % (sOFF, sOFF, sPH))
                e("s_add_u32 s%d, s%d, %d" % (sOFF, sOFF, nstatB * 0x20000))
                e("s_and_b32 s%d, s%d, s%d" % (sOFF, sOFF, sMASK))
                e("s_add_u32 s%d, s%d, s%d" % (sOFF, sOFF, sBASE))
                e("s_branch L_go")
                e("L_first:")
                req()
                e("L_stat:")
            else:
                e("s_cmp_ge_u32 s%d, %d" % (sTI, NT)); e("s_cbranch_scc1 L_ld_drain")
            e("s_cmp_lg_u32 s%d, %d" % (sTI, NT_A)); e("s_cbranch_scc1 L_nosw")
            c("branch A window done, continue with branch B")
            e("s_mov_b32 s%d, s16" % sKD); e("s_mov_b32 s%d, s17" % (sKD + 1))
            e("s_mov_b32 s%d, s18" % sVD); e("s_mov_b32 s%d, s19" % (sVD + 1))
            e("s_lshl_b32 s%d, s%d, 23" % (sBASE, sH))
            e("s_mov_b32 s%d, 0x7fffff" % sMASK)
            e("s_lshl_b32 s%d, s%d, 13" % (sTMP, sS))
            e("s_add_u32 s%d, s%d, s%d" % (sLIN, sPH, sTMP))
            e("L_nosw:")
            static_off()
            e("L_go:")
        issue(sKD if isK else sVD)
    e("L_ld_loop:")
    if D % 2: step(False); step(True)
    else: step(True); step(False)
    e("s_branch L_ld_loop")
    e("L_ld_drain:")
    e("v_mov_b32 v5, s%d" % sTI)
    e("ds_write_b32 v%d, v5 offset:%d" % (vLB, O_TOTAL))
    e("s_lshl_b32 s%d, s%d, 1" % (sTMP, sTI))
    for k in range(D - 2, -1, -1):
        e("s_sub_u32 s%d, s%d, %d" % (sTMP2, sTMP, k))
        e("v_mov_b32 v4, s%d" % sTMP2)
        e("s_waitcnt vmcnt(%d)" % (k * 8))
        e("ds_max_u32 v%d, v4 offset:%d" % (vLB, O_LANDED))
    if stamps: e("v_writelane_b32 v%d, s%d, 14" % (NV, sTI)); e("v_writelane_b32 v%d, 0, 15" % NV)
    stamp(1)
    if prio: e("s_setprio 0")
    c("final reduction roles: workgroups 0..35 branch B, 64..99 branch A")
    e("s_mov_b32 s%d, 1" % sB); e("s_mov_b32 s%d, s2" % sRJ)
    e("s_cmp_lt_u32 s2, %d" % NRED); e("s_cbranch_scc1 L_reduce")
    e("s_mov_b32 s%d, 0" % sB); e("s_sub_u32 s%d, s2, %d" % (sRJ, REDA))
    e("s_cmp_lt_u32 s%d, %d" % (sRJ, NRED)); e("s_cbranch_scc1 L_reduce")
    e("L_ld_done:")
    if diagspin:
        e("L_dspin:"); e("s_memrealtime s[100:101]"); e("s_waitcnt lgkmcnt(0)"); e("s_sub_u32 s100, s100, s98")
        e("s_cmp_lt_u32 s100, %d" % diagspin); e("s_cbranch_scc1 L_dspin")
    stamp(2); stamp_flush()
    if stamps == 2:
        e("s_add_u32 s44, s28, 0x11000000"); e("s_addc_u32 s45, s29, 0")
        e("s_lshl_b32 s46, s2, 9"); e("v_lshl_add_u32 v1, v%d, 2, s46" % vL)
        e("global_store_dword v1, v241, s[44:45]"); e("global_store_dword v1, v242, s[44:45] offset:256")
    e("L_end:")
    e("s_endpgm")
    c("---- sum 128 partial rows for 16 output columns")
    a = vK
    e("L_reduce:")
    srd(sWSD, 28, WS_SIZE); srd(sOUTD, 24, 2304)
    e("v_lshrrev_b32 v1, 2, v%d" % vL); e("v_mul_u32_u24 v1, 1152, v1"); e("v_and_b32 v2, 3, v%d" % vL); e("v_lshl_add_u32 v1, v2, 4, v1")
    e("s_cmp_ge_u32 s%d, 18" % sRJ); e("s_cselect_b32 s%d, %d, 0" % (sST + 8, 128 * 1152 - 18 * 64))
    e("s_lshl_b32 s%d, s%d, 6" % (sST + 9, sRJ)); e("s_add_u32 s%d, s%d, s%d" % (sST + 8, sST + 8, sST + 9))
    e("s_mul_i32 s%d, s%d, %d" % (sST + 9, sB, 256 * 1152)); e("s_add_u32 s%d, s%d, s%d" % (sST + 8, sST + 8, sST + 9))
    e("s_add_u32 s%d, s%d, %d" % (sST + 8, sST + 8, WS_H2))
    e("s_mul_i32 s%d, s%d, 1152" % (sST + 6, sB)); e("s_lshl_b32 s%d, s%d, 5" % (sST + 7, sRJ)); e("s_add_u32 s%d, s%d, s%d" % (sST + 6, sST + 6, sST + 7))
    c("column = c4*4 + e(row): the lane rows end up holding e = 0,2,1,3")
    e("v_lshrrev_b32 v5, 5, v%d" % vL); e("v_bfe_u32 v4, v%d, 4, 1" % vL)
    e("v_lshl_add_u32 v5, v4, 1, v5"); e("v_lshl_add_u32 v5, v2, 2, v5"); e("v_lshlrev_b32 v5, 1, v5")
    lds_wait(vLB, O_OPR + 4, 1, 1, tmp=sST + 9, dst=6)
    e("s_add_u32 s%d, s%d, %#x" % (sTAG, sTAG, TAGINC))
    x0, y0 = a + 8, a + 40
    nset = 2 if pipe2 else 1
    def r1issue(x):
        e("s_mov_b32 s%d, s%d" % (sST + 9, sST + 8))
        for i in range(8):
            e("buffer_load_dwordx4 %s, v1, s[%d:%d], s%d offen sc1" % (vr(x + 4 * i, 4), sWSD, sWSD + 3, sST + 9))
            if i < 7: e("s_add_u32 s%d, s%d, %d" % (sST + 9, sST + 9, 16 * 1152))
    def r1check(x):
        for i in range(8):
            r = x + 4 * i
            e("s_waitcnt vmcnt(%d)" % (8 * nset - 1 - i))
            if i == 0: e("v_xor_b32 v3, s%d, v%d" % (sTAG, r + 3))
            else: e("v_bitop3_b32 v3, v3, v%d, s%d bitop3:0xf6" % (r + 3, sTAG))
            e("v_lshlrev_b32 v%d, 8, v%d" % (r + 3, r + 2))
            e("v_alignbit_b32 v%d, v%d, v%d, 16" % (r + 2, r + 1, r + 2))
            e("v_alignbit_b32 v%d, v%d, v%d, 8" % (r + 1, r, r + 1))
            if i:
                e("v_pk_add_f32 %s, %s, %s" % (vr(x + 2, 2), vr(x + 2, 2), vr(r + 2, 2)))
                e("v_pk_add_f32 %s, %s, %s" % (vr(x, 2), vr(x, 2), vr(r, 2)))
        e("v_cmp_ne_u32 vcc, 0, v3")
    def r1head(x):
        e("s_nop 0")
        for i in range(4): e("v_add_f32_dpp v%d, v%d, v%d row_ror:4 row_mask:0xf bank_mask:0xf" % (a + i, x + i, x + i))
    if pipe2:
        r1issue(x0)
        e("s_mov_b64 vcc, -1")
        slp(pd2)
        e("s_branch L_r1okx")
        e("L_r1spin:")
        r1issue(y0); r1check(x0)
        e("s_cbranch_vccz L_r1okx")
        r1issue(x0); r1check(y0)
        e("s_cbranch_vccz L_r1oky")
        bound(); e("s_branch L_r1spin")
        e("L_r1oky:")
        r1head(y0); e("s_branch L_r1tail")
    else:
        e("s_mov_b64 vcc, -1")
        e("s_branch L_r1okx")
        e("L_r1spin:")
        r1issue(x0); r1check(x0)
        e("s_cbranch_vccz L_r1okx")
        bound(); slp(gsleep); e("s_branch L_r1spin")
    e("L_r1okx:")
    r1head(x0)
    e("L_r1tail:")
    for i in range(4): e("v_add_f32_dpp v%d, v%d, v%d row_ror:8 row_mask:0xf bank_mask:0xf" % (a + i, a + i, a + i))
    e("s_nop 0")
    e("v_permlane32_swap_b32 v%d, v%d" % (a, a + 1)); e("v_permlane32_swap_b32 v%d, v%d" % (a + 2, a + 3))
    e("v_add_f32 v%d, v%d, v%d" % (a, a, a + 1)); e("v_add_f32 v%d, v%d, v%d" % (a + 2, a + 2, a + 3))
    e("s_nop 1")
    e("v_permlane16_swap_b32 v%d, v%d" % (a, a + 2))
    e("v_add_f32 v%d, v%d, v%d" % (a, a, a + 2))
    e("v_cvt_pk_bf16_f32 v%d, v%d, v%d" % (a, a, a))
    e("s_cbranch_vccnz L_r1spin")
    e("s_mov_b32 exec_lo, 0x000f000f"); e("s_mov_b32 exec_hi, 0x000f000f")
    e("buffer_store_short v%d, v5, s[%d:%d], s%d offen sc1" % (a, sOUTD, sOUTD + 3, sST + 6))
    e("s_mov_b64 exec, -1")
    c("every workgroup has read the tag word by now: advance it for the next launch")
    e("s_cmp_lg_u32 s2, 0"); e("s_cbranch_scc1 L_ld_done")
    e("v_mov_b32 v1, s%d" % sTAG); e("v_mov_b32 v2, %d" % WS_NONCE)
    e("s_mov_b64 exec, 1"); e("buffer_store_dword v1, v2, s[%d:%d], 0 offen sc1" % (sWSD, sWSD + 3)); e("s_mov_b64 exec, -1")
    e("s_branch L_ld_done")

    c("==== service wave")
    e("L_service:")
    rW = 24
    vAH1 = 8
    e("v_mov_b32 v2, 0"); e("v_mov_b32 v3, -1"); e("v_mov_b32 v4, 0"); e("v_mov_b32 v5, 1"); e("v_mov_b32 v6, 2")
    for i in range(4): e("v_mov_b32 v%d, 0" % (12 + i))
    e("ds_write_b64 v%d, v[2:3] offset:%d" % (vLB, O_LANDED))
    e("ds_write_b96 v%d, v[4:6] offset:%d" % (vLB, O_NEXT))
    e("ds_write_b128 v%d, v[12:15] offset:32" % vLB)
    e("ds_write_b128 v%d, v[12:15] offset:48" % vLB)
    e("v_lshlrev_b32 v7, 4, v%d" % vL)
    for i in range(4): e("v_mov_b32 v%d, -1" % (16 + i))
    e("s_lshl_b32 s%d, s2, 10" % (sST + 5)); e("s_add_u32 s%d, s%d, %d" % (sST + 5, sST + 5, WS_H1)); e("s_add_u32 s%d, s%d, %d" % (sST + 6, sST + 5, 256 * 1024))
    e("s_waitcnt lgkmcnt(0)")
    e("s_load_dword s%d, s[28:29], %d" % (sTAG, WS_NONCE))
    srd(sWSD, 28, WS_SIZE)
    if dyn:
        e("s_cmp_lg_u32 s%d, 0" % sS); e("s_cbranch_scc1 L_noz")
        e("s_lshl_b32 s%d, s%d, 8" % (sST + 7, sH)); e("s_add_u32 s%d, s%d, %d" % (sST + 7, sST + 7, WS_CTR))
        e("s_mov_b64 exec, 1"); e("buffer_store_dword v2, v2, s[%d:%d], s%d offen sc1" % (sWSD, sWSD + 3, sST + 7)); e("s_mov_b64 exec, -1")
        e("L_noz:")
    if not clr0: e("s_barrier")
    c("mark this workgroup's two split records empty (all-ones words never occur in a published record)")
    for so in (sST + 5, sST + 6):
        e("buffer_store_dwordx4 v[16:19], v7, s[%d:%d], s%d offen sc1" % (sWSD, sWSD + 3, so))
    if clr0: e("s_barrier")
    e("s_mov_b32 s%d, %#x" % (sLOG2E, LOG2E))
    packsel()
    e("v_and_b32 v5, 15, v%d" % vL); e("v_lshrrev_b32 v6, 4, v%d" % vL)
    e("v_lshlrev_b32 v5, 10, v5"); e("v_lshl_add_u32 v%d, v6, 5, v5" % vAH1)
    e("v_mul_u32_u24 v10, %d, v6" % (6 * 256)); e("v_and_b32 v11, 15, v%d" % vL); e("v_lshl_add_u32 v10, v11, 4, v10"); e("v_add_u32 v10, v10, v%d" % vLB)
    c("q piece (16 B) = four partial sums (top 24 bits each) + tag; 256 B per workgroup")
    e("s_lshl_b32 s%d, s%d, 12" % (sST + 10, sH))
    e("s_lshl_b32 s%d, s%d, 8" % (sST + 9, sS))
    e("s_add_u32 s%d, s%d, s%d" % (sST + 9, sST + 10, sST + 9))
    lds_wait(vLB, O_CNTQ, 3, csleep)
    for r in range(6): e("ds_read_b128 %s, v10 offset:%d" % (vr(rW + 4 * r, 4), O_SCR + r * 256))
    e("s_add_u32 s%d, s%d, %#x" % (sTAG, sTAG, TAGINC))
    e("v_mov_b32 v%d, s%d" % (rW + 27, sTAG))
    e("s_waitcnt lgkmcnt(0)")
    for dst, src in ((0, 3), (1, 4), (2, 5), (0, 1), (0, 2)):
        for hh in range(2): e("v_pk_add_f32 %s, %s, %s" % (vr(rW + 4 * dst + 2 * hh, 2), vr(rW + 4 * dst + 2 * hh, 2), vr(rW + 4 * src + 2 * hh, 2)))
    for sw in ("16", "32"):
        for d in range(4): e("v_mov_b32 v%d, v%d" % (rW + 4 + d, rW + d))
        for d in range(4): e("v_permlane%s_swap_b32 v%d, v%d" % (sw, rW + d, rW + 4 + d))
        for hh in range(2): e("v_pk_add_f32 %s, %s, %s" % (vr(rW + 2 * hh, 2), vr(rW + 2 * hh, 2), vr(rW + 4 + 2 * hh, 2)))
    for d in range(4): e("v_add_u32 v%d, 0x80, v%d" % (rW + d, rW + d))
    pack4(rW + 24, rW)
    e("s_waitcnt vmcnt(0)")
    e("s_mov_b64 exec, 0xffff")
    e("buffer_store_dwordx4 %s, v7, s[%d:%d], s%d offen sc1" % (vr(rW + 24, 4), sWSD, sWSD + 3, sST + 9))
    e("s_mov_b64 exec, -1")
    stamp(1)
    rR = rW + 32
    def qgather(b):
        e("L_qspin%d:" % b)
        for j in range(2):
            e("buffer_load_dwordx4 %s, v7, s[%d:%d], s%d offen offset:%d sc1" % (vr(rR + 4 * j, 4), sWSD, sWSD + 3, sST + 10, (2 * j + b) * 1024))
        for j in range(2):
            r = rR + 4 * j
            e("s_waitcnt vmcnt(%d)" % (1 - j))
            if j == 0: e("v_xor_b32 v4, s%d, v%d" % (sTAG, r + 3))
            else: e("v_bitop3_b32 v4, v4, v%d, s%d bitop3:0xf6" % (r + 3, sTAG))
            e("v_lshlrev_b32 v%d, 8, v%d" % (r + 3, r + 2))
            e("v_alignbit_b32 v%d, v%d, v%d, 16" % (r + 2, r + 1, r + 2))
            e("v_alignbit_b32 v%d, v%d, v%d, 8" % (r + 1, r, r + 1))
            for d in range(3): e("v_and_b32 v%d, 0xffffff00, v%d" % (r + d, r + d))
        e("v_cmp_ne_u32 vcc, 0, v4")
        e("v_pk_add_f32 %s, %s, %s" % (vr(rR, 2), vr(rR, 2), vr(rR + 4, 2)))
        e("v_pk_add_f32 %s, %s, %s" % (vr(rR + 2, 2), vr(rR + 2, 2), vr(rR + 6, 2)))
        e("s_cbranch_vccz L_qready%d" % b)
        bound(); slp(gsleep); e("s_branch L_qspin%d" % b)
        e("L_qready%d:" % b)
        e("v_cvt_pk_bf16_f32 v%d, v%d, v%d" % (rR, rR, rR + 1)); e("v_cvt_pk_bf16_f32 v%d, v%d, v%d" % (rR + 1, rR + 2, rR + 3))
        e("v_lshl_add_u32 v4, v%d, 3, v%d" % (vL, vLB))
        e("v_mov_b32 v1, %d" % (b + 1))
        e("ds_write_b64 v4, %s offset:%d" % (vr(rR, 2), O_QB + b * 512))
        e("ds_write_b32 v%d, v1 offset:%d" % (vLB, O_QRDY))
    qgather(0)
    stamp(2)
    slp(bdelay)
    qgather(1)
    e("s_mov_b32 s%d, 0" % sB)
    e("L_svc_branch:")
    a = rW
    e("s_mul_i32 s%d, s%d, %d" % (sST + 2, sB, 3 * 1056)); e("s_add_u32 s%d, s%d, %d" % (sST + 2, sST + 2, LB + O_SCR))
    e("v_lshl_add_u32 v4, v%d, 4, s%d" % (vL, sST + 2))
    e("v_lshrrev_b32 v12, 5, v%d" % vL); e("v_lshl_add_u32 v5, v12, 3, s%d" % (sST + 2))
    e("s_lshl_b32 s%d, s%d, 2" % (sST + 2, sB)); e("v_add_u32 v3, s%d, v%d" % (sST + 2, vLB))
    e("s_lshl_b32 s%d, s%d, 6" % (sST + 2, sB)); e("v_and_b32 v13, 48, v%d" % vL); e("v_add3_u32 v13, v13, s%d, v%d" % (sST + 2, vLB))
    e("s_lshl_b32 s%d, s%d, 8" % (sST + 3, sB)); e("s_add_u32 s%d, s%d, s2" % (sST + 3, sST + 3))
    e("s_lshl_b32 s%d, s%d, 10" % (sST + 3, sST + 3)); e("s_add_u32 s%d, s%d, %d" % (sST + 3, sST + 3, WS_H1))
    e("s_and_b32 s%d, s%d, 0xffffc000" % (sST + 4, sST + 3))
    e("s_and_b32 s%d, s%d, 7" % (sST + 6, sS)); e("s_lshl_b32 s%d, s%d, 7" % (sST + 6, sST + 6))
    e("s_add_u32 s%d, s%d, s%d" % (sST + 4, sST + 4, sST + 6))
    lds_wait(3, O_CNTM, 1, csleep)
    lds_wait(3, O_CNTM, 3, 0)
    c("merge the three consumers' partials; publish o/l and log2-sum-exp")
    for cc in range(3): e("ds_read_b64 %s, v5 offset:%d" % (vr(a + 2 * cc, 2), cc * 1056 + 1024))
    for cc in range(3): e("ds_read_b128 %s, v4 offset:%d" % (vr(a + 8 + 4 * cc, 4), cc * 1056))
    e("s_waitcnt lgkmcnt(3)")
    e("v_max3_f32 v6, v%d, v%d, v%d" % (a, a + 2, a + 4))
    for cc in range(3): e("v_sub_f32 v%d, v%d, v6" % (a + 2 * cc, a + 2 * cc))
    for cc in range(3): e("v_mul_f32 v%d, s%d, v%d" % (a + 2 * cc, sLOG2E, a + 2 * cc))
    for cc in range(3): e("v_exp_f32 v%d, v%d" % (a + 2 * cc, a + 2 * cc))
    e("s_nop 0")
    e("v_mul_f32 v14, v%d, v%d" % (a, a + 1))
    e("v_fmac_f32 v14, v%d, v%d" % (a + 2, a + 3)); e("v_fmac_f32 v14, v%d, v%d" % (a + 4, a + 5))
    e("v_rcp_f32 v15, v14"); e("v_log_f32 v14, v14")
    e("s_waitcnt lgkmcnt(0)")
    for d in range(4): e("v_mul_f32 v%d, v%d, v%d" % (a + 8 + d, a + 8 + d, a))
    e("v_fmac_f32 v14, s%d, v6" % sLOG2E)
    for d in range(4): e("v_fmac_f32 v%d, v%d, v%d" % (a + 8 + d, a + 12 + d, a + 2))
    e("v_mov_b32 v19, v14")
    for d in range(4): e("v_fmac_f32 v%d, v%d, v%d" % (a + 8 + d, a + 16 + d, a + 4))
    for d in range(4): e("v_mul_f32 v%d, v%d, v15" % (a + 8 + d, a + 8 + d))
    c("16-byte piece = four values (top 24 bits each) + log2-sum-exp")
    pack4(16, a + 8)
    def defer(n):
        l = lab("nodef")
        e("s_cmp_lg_u32 s%d, 0" % sB); e("s_cbranch_scc1 %s" % l)
        if n > 0: lds_wait(vLB, O_LANDED, n, 16)
        else: lds_wait(vLB, O_TOTAL, 0, 4, cmp="ge_i32")
        e("%s:" % l)
    if pdefer: defer(pdefer)
    e("buffer_store_dwordx4 v[16:19], v7, s[%d:%d], s%d offen sc1" % (sWSD, sWSD + 3, sST + 3))
    if adefer: defer(adefer)
    if stamps:
        l = lab("s"); e("s_cmp_eq_u32 s%d, 0" % sB); e("s_cbranch_scc1 %s" % l); stamp(4); e("%s:" % l)
    a = rW + 24
    x = a + 16
    c("combine the 16 splits for this workgroup's 32 dims")
    e("L_h1spin:")
    e("buffer_load_dwordx4 %s, v%d, s[%d:%d], s%d offen sc1" % (vr(x, 4), vAH1, sWSD, sWSD + 3, sST + 4))
    e("buffer_load_dwordx4 %s, v%d, s[%d:%d], s%d offen offset:16 sc1" % (vr(x + 4, 4), vAH1, sWSD, sWSD + 3, sST + 4))
    e("s_waitcnt vmcnt(1)")
    e("v_max_f32_dpp v14, v%d, v%d row_ror:8 row_mask:0xf bank_mask:0xf" % (x + 3, x + 3))
    e("v_max3_u32 v15, v%d, v%d, v%d" % (x, x + 1, x + 2))
    e("v_alignbit_b32 v%d, v%d, v%d, 8" % (a + 1, x, x + 1))
    e("v_max_f32_dpp v14, v14, v14 row_ror:4 row_mask:0xf bank_mask:0xf")
    e("v_alignbit_b32 v%d, v%d, v%d, 16" % (a + 2, x + 1, x + 2))
    e("v_lshlrev_b32 v%d, 8, v%d" % (a + 3, x + 2))
    e("v_max_f32_dpp v14, v14, v14 row_ror:2 row_mask:0xf bank_mask:0xf")
    e("s_waitcnt vmcnt(0)")
    e("v_max3_u32 v15, v15, v%d, v%d" % (x + 3, x + 4))
    e("v_max_f32_dpp v14, v14, v14 row_ror:1 row_mask:0xf bank_mask:0xf")
    e("v_max3_u32 v15, v15, v%d, v%d" % (x + 5, x + 6))
    e("v_sub_f32 v14, v%d, v14" % (x + 3))
    e("v_max_u32 v15, v15, v%d" % (x + 7))
    e("v_exp_f32 v14, v14")
    e("v_cmp_eq_u32 vcc, -1, v15")
    e("v_alignbit_b32 v%d, v%d, v%d, 8" % (a + 5, x + 4, x + 5))
    e("v_alignbit_b32 v%d, v%d, v%d, 16" % (a + 6, x + 5, x + 6))
    e("v_lshlrev_b32 v%d, 8, v%d" % (a + 7, x + 6))
    e("s_cbranch_vccz L_h1ok")
    bound(); slp(gsleep); e("s_branch L_h1spin")
    e("L_h1ok:")
    for i in range(8): e("v_mul_f32 v%d, v%d, v14" % (a + i, (x + i if i % 4 == 0 else a + i)))
    for r in (8, 4, 2, 1):
        e("v_add_f32_dpp v14, v14, v14 row_ror:%d row_mask:0xf bank_mask:0xf" % r)
        for i in range(8): e("v_add_f32_dpp v%d, v%d, v%d row_ror:%d row_mask:0xf bank_mask:0xf" % (a + i, a + i, a + i, r))
    e("v_rcp_f32 v14, v14"); e("s_nop 0")
    for i in range(8): e("v_mul_f32 v%d, v%d, v14" % (a + i, a + i))
    for p in range(4): e("v_cvt_pk_bf16_f32 v%d, v%d, v%d" % (a + 12 + p, a + 2 * p, a + 2 * p + 1))
    e("s_mov_b32 exec_lo, 0x00010001"); e("s_mov_b32 exec_hi, 0x00010001")
    e("ds_write_b128 v13, %s offset:%d" % (vr(a + 12, 4), O_OP))
    e("ds_write_b32 v3, v1 offset:%d" % O_OPR)
    e("s_mov_b64 exec, -1")
    e("s_add_u32 s%d, s%d, 1" % (sB, sB))
    if stamps:
        l = lab("s"); e("s_cmp_eq_u32 s%d, 2" % sB); e("s_cbranch_scc1 %s" % l); stamp(3); e("%s:" % l)
    e("s_cmp_lt_u32 s%d, 2" % sB); e("s_cbranch_scc1 L_svc_branch")
    stamp(5); stamp_flush()
    e("s_endpgm")

    nv = NV + (8 if stamps else 0)
    e('.section .rodata,"a"\n.p2align 6\n.amdhsa_kernel %s_kernel' % KN)
    e("  .amdhsa_next_free_vgpr %d\n  .amdhsa_next_free_sgpr 102\n  .amdhsa_accum_offset %d" % (nv, nv))
    e("  .amdhsa_group_segment_fixed_size 0\n  .amdhsa_kernarg_size 104\n  .amdhsa_user_sgpr_count 2\n  .amdhsa_user_sgpr_kernarg_segment_ptr 1\n  .amdhsa_system_sgpr_workgroup_id_x 1\n  .amdhsa_float_denorm_mode_32 3\n.end_amdhsa_kernel")
    return "\n".join(("    " + x if x and not x.endswith(":") and not x.startswith((";", ".", " ")) else x) for x in L) + "\n"

if __name__ == "__main__":
    out = sys.argv[1]
    kw = {}
    for a in sys.argv[2:]:
        k, v = a.split("=")
        kw[k] = v.replace("+", " ") if k.endswith("pol") else int(v)
    t = gen(**kw)
    open(out, "w").write(t)
    for p in hazard.check(t): print("HAZARD", p)
```

```python
import sys, os
sys.path.insert(0, os.path.dirname(os.path.abspath(__file__)))
import hazard
KN = "concat_heads__sliding_block_cached__gqa_block_cached__decode"
HEADER = open(os.path.join(os.path.dirname(os.path.abspath(__file__)), "header.txt")).read()

def gen(stamps=0, D=3, NTS=9, P0=0, barw=8, phaseA=384, phaseB=640, rot=1, nstatB=59, prio=1,
        csleep=1, gsleep=1, bdelay=40, adefer=130, woearly=0, pipe2=1, pd2=12, pol="nt", diagspin=0, clr0=1, ssleep=1, h1delay=16, wowait=0, nowo=0, wosplit=0, ldpol='sc1', stpol='sc1', aorder=0, one=1, WN=None, WK=None, WH=19, WL=None, jit=0):
    if WL: WL = [int(x) for x in WL.split(':')]; assert len(WL) == 8; WN = WK = WL[0]; D = 3
    if WN is None: WN = (D - 1) * 8
    if WK is None: WK = WN
    if not WL: D = -(-max(WN, WK) // 8) + 1
    pubi = 0
    if WL:
        while WL[pubi] - pubi > 16: pubi += 1
    L = []
    def e(s=""):
        for x in s.split("\n"): L.append(x)
    def c(s): e("; " + s)
    NT_A, NT_B = 8, 64
    NT = NT_A + NT_B
    RING = NTS * 16384
    LB = RING
    O_LANDED, O_TOTAL, O_NEXT, O_CNTQ, O_CNTM, O_QRDY, O_OPR, O_PUB = 0, 4, 16, 32, 36, 44, 48, 56
    O_OP = 64
    O_QB = 192
    O_SCR = 1216
    LDS_BYTES = RING + O_SCR + 6400
    WS_QX, WS_NONCE, WS_CTR, WS_H1 = 0, 0x10000, 0x11000, 0x20000
    WS_H2 = WS_H1 + 512 * 1024
    WS_SIZE = WS_H2 + 512 * 1152
    TAGINC = 0x9e3779b9
    dyn = nstatB < NT_B
    NSTAT = NT_A + nstatB
    NDYN = 16 * (NT_B - nstatB)
    LOG2E, SCALE = 0x3fb8aa3b, 0x3db504f3
    NRED, REDA = 36, 64
    sW, sH, sS, sWO, sBOUND, sCST, sCCNT = 3, 30, 31, 32, 33, 34, 35
    sKD, sVD = 36, 40
    sEND, sWI, sRET2 = 36, 37, 38
    sPK0, sPK1, sPK2, sUP = 40, 41, 42, 43
    sOFF, sOFF2, sLIN, sBASE, sMASK, sSLOT, sTI, sFREE, sTMP, sTMP2 = 44, 45, 46, 47, 48, 49, 51, 52, 53, 54
    sST = 44
    sTAG = 55
    sWSD, sXD, sQD, sOD, sOUTD = 56, 60, 64, 68, 72
    sCTR, sTK, sPH = 60, 62, 64
    sM1, sM2, sM3, sMG, sAL, sRET = 76, 78, 80, 82, 84, 86
    sRJ, sH2 = 88, 89
    sT, sSL, sNEED, sLAND, sB, sC = 90, 91, 92, 93, 94, 95
    sLOG2E, sSCALE, sPLO, sPHI = 96, 97, 98, 99
    vL = 0
    vQ, vK, vV, vO, vS, vP, vRA, vRB = 8, 24, 56, 88, 120, 128, 132, 164
    vAK0, vAV0, vAK, vAV = 196, 197, 198, 202
    vM, vMC, vLS, vPM = 210, 211, 212, 213
    vT = 217
    vLB, vX, vAWO, vAH2, vAMD, vAML, vANX, vL16 = 232, 233, 234, 235, 236, 237, 238, 239
    NV = 240
    def stamp(idx):
        if stamps:
            e("s_memrealtime s[100:101]"); e("s_waitcnt lgkmcnt(0)")
            e("v_writelane_b32 v%d, s100, %d" % (NV, 2 * idx)); e("v_writelane_b32 v%d, s101, %d" % (NV, 2 * idx + 1))
    def stamp_flush():
        if stamps:
            e("s_add_u32 s44, s28, 0x10000000"); e("s_addc_u32 s45, s29, 0")
            e("s_lshl_b32 s46, s2, 9"); e("s_lshl_b32 s47, s%d, 6" % sW); e("s_add_u32 s46, s46, s47")
            e("v_lshl_add_u32 v1, v%d, 2, s46" % vL)
            e("s_mov_b64 exec, 0xffff")
            e("global_store_dword v1, v%d, s[44:45]" % NV)
            e("s_mov_b64 exec, -1")
    uid = [0]
    def lab(n):
        uid[0] += 1; return "L_%s_%d" % (n, uid[0])
    def bound():
        e("s_sub_u32 s%d, s%d, 1" % (sBOUND, sBOUND)); e("s_cbranch_scc1 L_end")
    def srd(d, p, n):
        e("s_mov_b32 s%d, s%d" % (d, p)); e("s_mov_b32 s%d, s%d" % (d + 1, p + 1))
        e("s_mov_b32 s%d, %s" % (d + 2, n)); e("s_mov_b32 s%d, 0x20000" % (d + 3))
    def vr(b, n): return "v[%d:%d]" % (b, b + n - 1)
    def call(l, r=sRET): e("s_call_b64 s[%d:%d], %s" % (r, r + 1, l))
    def ret(r=sRET): e("s_setpc_b64 s[%d:%d]" % (r, r + 1))
    def slp(n):
        if n: e("s_sleep %d" % n)
    def lds_wait(addr_v, off, val, n_sleep, tmp=sST + 8, dst=1, cmp="ge_u32"):
        sp = lab("w"); ok = lab("ok")
        e("%s:" % sp)
        e("ds_read_b32 v%d, v%d offset:%d" % (dst, addr_v, off))
        e("s_waitcnt lgkmcnt(0)")
        e("v_readfirstlane_b32 s%d, v%d" % (tmp, dst))
        e("s_cmp_%s s%d, %d" % (cmp, tmp, val)); e("s_cbranch_scc1 %s" % ok)
        bound(); slp(n_sleep); e("s_branch %s" % sp)
        e("%s:" % ok)
    def ds1(ins):
        if one: e("s_mov_b64 exec, 1")
        e(ins)
        if one: e("s_mov_b64 exec, -1")
    def jitter(p=3, n=40):
        if jit:
            l = lab("j")
            e("s_mul_i32 s101, s101, 1664525"); e("s_add_u32 s101, s101, 1013904223")
            e("s_lshr_b32 s100, s101, %d" % (32 - p)); e("s_cbranch_scc1 %s" % l)
            e("s_sleep %d" % min(127, n * jit)); e("%s:" % l)
    def packsel():
        e("s_mov_b32 s%d, 0x07060503" % sPK0); e("s_mov_b32 s%d, 0x06050302" % sPK1); e("s_mov_b32 s%d, 0x05030201" % sPK2)
    def pack4(dst, src):
        e("v_perm_b32 v%d, v%d, v%d, s%d" % (dst, src, src + 1, sPK0))
        e("v_perm_b32 v%d, v%d, v%d, s%d" % (dst + 1, src + 1, src + 2, sPK1))
        e("v_perm_b32 v%d, v%d, v%d, s%d" % (dst + 2, src + 2, src + 3, sPK2))

    e(HEADER.rstrip())
    e("; @launch grid=(256,1,1) block=(320,1,1) lds=%d" % LDS_BYTES)
    e('.amdgcn_target "amdgcn-amd-amdhsa--gfx950"')
    e(".text\n.globl %s_kernel\n.p2align 8\n.type %s_kernel,@function\n%s_kernel:" % (KN, KN, KN))
    e("s_cmp_ge_u32 s2, 256")
    e("s_cbranch_scc1 L_end")
    e("s_load_dwordx16 s[4:19], s[0:1], 0")
    e("s_load_dwordx8 s[20:27], s[0:1], 64")
    e("s_load_dwordx2 s[28:29], s[0:1], 96")
    e("v_lshrrev_b32 v1, 6, v0")
    e("v_and_b32 v%d, 63, v0" % vL)
    e("v_readfirstlane_b32 s%d, v1" % sW)
    e("s_lshr_b32 s%d, s2, 4" % sH)
    e("s_and_b32 s%d, s2, 15" % sS)
    e("s_mov_b32 s%d, 0x200000" % sBOUND)
    if diagspin: e("s_memrealtime s[98:99]")
    e("v_mov_b32 v%d, %d" % (vLB, LB))
    if stamps:
        e("v_mov_b32 v%d, 0" % NV); e("v_mov_b32 v241, 0"); e("v_mov_b32 v242, 0"); e("s_waitcnt lgkmcnt(0)"); stamp(0)
    if jit:
        e("s_memrealtime s[100:101]"); e("s_waitcnt lgkmcnt(0)"); e("s_mul_i32 s101, s2, 77"); e("s_add_u32 s101, s101, s100"); e("s_mul_i32 s100, s%d, 99991" % sW); e("s_add_u32 s101, s101, s100")
        jitter(1, 60); jitter(2, 60)
    e("s_cmp_eq_u32 s%d, 1" % sW)
    e("s_cbranch_scc1 L_loader")
    e("s_cmp_eq_u32 s%d, 4" % sW)
    e("s_cbranch_scc1 L_service")

    c("==== consumers.  q-projection block of this workgroup: 64 columns (s&7) x 288 rows (s>>3), 96 rows per wave")
    e("s_sub_u32 s%d, s%d, 1" % (sC, sW)); e("s_cselect_b32 s%d, 0, s%d" % (sC, sC))
    rW, rX, rACC = 24, 72, 80
    e("v_lshrrev_b32 v1, 3, v%d" % vL)
    e("v_and_b32 v2, 7, v%d" % vL)
    e("v_mul_u32_u24 v3, 24, v1")
    e("v_mul_u32_u24 v4, %d, v1" % (12 * 8192))
    e("v_lshl_add_u32 v4, v2, 4, v4")
    e("s_lshr_b32 s%d, s%d, 3" % (sST, sS))
    e("s_mul_i32 s%d, s%d, 288" % (sST + 1, sST))
    e("s_mul_i32 s%d, s%d, 96" % (sST + 2, sC))
    e("s_add_u32 s%d, s%d, s%d" % (sST + 1, sST + 1, sST + 2))
    e("s_lshl_b32 s%d, s%d, 1" % (sST + 2, sST + 1))
    e("s_lshl_b32 s%d, s%d, 13" % (sST + 3, sST + 1))
    e("s_lshl_b32 s%d, s%d, 9" % (sST + 4, sH))
    e("s_and_b32 s%d, s%d, 3" % (sST + 5, sS))
    e("s_lshl_b32 s%d, s%d, 7" % (sST + 5, sST + 5))
    e("s_add_u32 s%d, s%d, s%d" % (sST + 3, sST + 3, sST + 4))
    e("s_add_u32 s%d, s%d, s%d" % (sST + 3, sST + 3, sST + 5))
    e("s_mov_b32 s%d, 1152" % (sXD + 2)); e("s_mov_b32 s%d, 0x20000" % (sXD + 3))
    e("s_mov_b32 s%d, 4718592" % (sQD + 2)); e("s_mov_b32 s%d, 0x20000" % (sQD + 3))
    e("s_bitcmp1_b32 s%d, 2" % sS)
    e("s_waitcnt lgkmcnt(0)")
    e("s_cselect_b32 s%d, s20, s10" % sQD); e("s_cselect_b32 s%d, s21, s11" % (sQD + 1))
    e("s_cselect_b32 s%d, s14, s4" % sXD); e("s_cselect_b32 s%d, s15, s5" % (sXD + 1))
    for i in range(12):
        e("buffer_load_dwordx4 %s, v4, s[%d:%d], s%d offen %s" % (vr(rW + 4 * i, 4), sQD, sQD + 3, sST + 3, pol))
        if i < 11: e("s_add_u32 s%d, s%d, 8192" % (sST + 3, sST + 3))
        if i == 1:
            for k in range(3):
                e("buffer_load_dwordx2 %s, v3, s[%d:%d], s%d offen offset:%d" % (vr(rX + 2 * k, 2), sXD, sXD + 3, sST + 2, 8 * k))
    e("s_load_dword s%d, s[28:29], %d" % (sTAG, WS_NONCE))
    srd(sWSD, 28, WS_SIZE)
    c("own projection record (branch 0): index = sc*128 + h*8 + (s&7)")
    e("s_lshl_b32 s%d, s%d, 7" % (sST + 6, sST))
    e("s_lshl_b32 s%d, s%d, 3" % (sST + 7, sH)); e("s_and_b32 s%d, s%d, 7" % (sST + 8, sS)); e("s_add_u32 s%d, s%d, s%d" % (sST + 7, sST + 7, sST + 8))
    e("s_add_u32 s%d, s%d, s%d" % (sST + 6, sST + 6, sST + 7))
    e("s_mul_i32 s%d, s%d, 1152" % (sH2, sST + 6)); e("s_add_u32 s%d, s%d, %d" % (sH2, sH2, WS_H2))
    e("s_mov_b32 s%d, 0xcccccccc" % sM1); e("s_mov_b32 s%d, 0xcccccccc" % (sM1 + 1))
    e("s_mov_b32 s%d, 0xf0f0f0f0" % sM2); e("s_mov_b32 s%d, 0xf0f0f0f0" % (sM2 + 1))
    e("s_mov_b32 s%d, 0xff00ff00" % sM3); e("s_mov_b32 s%d, 0xff00ff00" % (sM3 + 1))
    e("s_mov_b32 s%d, 0xffff0000" % sMG); e("s_mov_b32 s%d, 0xffff0000" % (sMG + 1))
    e("s_mov_b32 s%d, %#x" % (sLOG2E, LOG2E)); e("s_mov_b32 s%d, %#x" % (sSCALE, SCALE))
    e("s_mov_b32 s%d, 0x05040100" % sPLO); e("s_mov_b32 s%d, 0x07060302" % sPHI)
    packsel()
    e("v_and_b32 v5, 15, v%d" % vL)
    e("v_lshrrev_b32 v6, 4, v%d" % vL)
    c("K fragment address: row m, 16-byte chunk slab ^ ((m&7)<<1)")
    e("v_and_b32 v7, 7, v5"); e("v_lshlrev_b32 v7, 1, v7"); e("v_xor_b32 v7, v7, v6")
    e("v_lshlrev_b32 v7, 4, v7"); e("v_lshl_add_u32 v%d, v5, 8, v7" % vAK0)
    c("V transpose-read address: row = 4g + (n>>2); row*256 + (row&7)*32 + (n&3)*8 + 8192")
    e("v_lshrrev_b32 v7, 2, v5"); e("v_lshl_add_u32 v7, v6, 2, v7")
    e("v_and_b32 v%d, 7, v7" % vT); e("v_lshlrev_b32 v%d, 5, v%d" % (vT, vT)); e("v_lshl_add_u32 v7, v7, 8, v%d" % vT)
    e("v_and_b32 v%d, 3, v5" % vT); e("v_lshl_add_u32 v7, v%d, 3, v7" % vT); e("v_add_u32 v%d, 0x2000, v7" % vAV0)
    c("P placement masks: lane column n = (j<<1 | head) keeps key slot j of its slab")
    e("v_mov_b32 v7, 0xffff"); e("v_mov_b32 v%d, 0xffff0000" % vT)
    e("v_cndmask_b32 v7, v7, v%d, s[%d:%d]" % (vT, sM1, sM1 + 1))
    e("v_lshrrev_b32 v%d, 2, v5" % vT)
    for p in range(4):
        e("v_cmp_eq_u32 vcc, %d, v%d" % (p, vT)); e("s_nop 1"); e("v_cndmask_b32 v%d, 0, v7, vcc" % (vPM + p))
    c("wo block of this workgroup: 32 rows x 288 columns; 16-byte column chunks per wave 16/16/4 or 4/16/16")
    e("s_lshl_b32 s%d, s%d, 4" % (sCST, sC))
    e("s_cmp_eq_u32 s%d, 2" % sC); e("s_cselect_b32 s%d, 4, 16" % sCCNT)
    e("s_cmp_eq_u32 s%d, 0" % sST); e("s_cbranch_scc1 L_sc0")
    e("s_sub_u32 s%d, s%d, 12" % (sCST, sCST))
    e("s_cmp_eq_u32 s%d, 0" % sC); e("s_cselect_b32 s%d, 4, 16" % sCCNT); e("s_cselect_b32 s%d, 0, s%d" % (sCST, sCST))
    e("L_sc0:")
    e("s_sub_u32 s%d, s%d, 1" % (sST + 8, sCCNT))
    e("v_min_u32 v7, s%d, v5" % (sST + 8))
    e("v_mul_u32_u24 v%d, %d, v6" % (vT, 2 * 1152))
    e("v_lshl_add_u32 v%d, v7, 4, v%d" % (vAWO, vT))
    e("v_lshlrev_b32 v7, 5, v5"); e("v_lshl_add_u32 v%d, v6, 4, v7" % vAH2)
    c("k = 8*slab + i of row block (head, xb) is dim (i&3)*32 + xb*8 + 2*slab + (i>>2)")
    e("s_lshl_b32 s%d, s%d, 8" % (sST + 8, sH)); e("s_bfe_u32 s%d, s%d, 0x10002" % (sST + 9, sS)); e("s_lshl_b32 s%d, s%d, 7" % (sST + 9, sST + 9))
    e("s_add_u32 s%d, s%d, s%d" % (sST + 8, sST + 8, sST + 9)); e("s_and_b32 s%d, s%d, 3" % (sST + 9, sS)); e("s_lshl_b32 s%d, s%d, 3" % (sST + 9, sST + 9))
    e("s_add_u32 s%d, s%d, s%d" % (sST + 8, sST + 8, sST + 9)); e("s_mul_i32 s%d, s%d, 1152" % (sST + 8, sST + 8))
    e("s_mul_i32 s%d, s%d, 576" % (sST + 9, sST)); e("s_add_u32 s%d, s%d, s%d" % (sST + 8, sST + 8, sST + 9))
    e("s_lshl_b32 s%d, s%d, 4" % (sST + 9, sCST)); e("s_add_u32 s%d, s%d, s%d" % (sWO, sST + 8, sST + 9))
    c("partial-result exchange addresses")
    e("v_lshlrev_b32 v%d, 4, v%d" % (vL16, vL)); e("v_add_u32 v%d, %d, v%d" % (vAMD, LB + O_SCR, vL16))
    e("v_lshrrev_b32 v7, 5, v%d" % vL); e("v_lshlrev_b32 v7, 3, v7"); e("v_add_u32 v%d, %d, v7" % (vAML, LB + O_SCR + 1024))
    e("s_lshl_b32 s%d, s%d, 2" % (sST + 8, sC)); e("v_add_u32 v%d, s%d, v%d" % (vANX, sST + 8, vLB))
    c("Q fragment address: head (n&1)*256 + slab*16")
    e("v_and_b32 v7, 1, v%d" % vL); e("v_lshlrev_b32 v7, 8, v7")
    e("v_lshl_add_u32 v7, v6, 4, v7"); e("v_add_u32 v%d, v7, v%d" % (vX, vLB))
    for k in range(8): e("v_mov_b32 v%d, 0" % (rACC + k))
    if barw < 13: e("s_waitcnt vmcnt(%d)" % barw)
    e("s_barrier")
    for pr in range(6):
        e("s_waitcnt vmcnt(%d)" % (10 - 2 * pr))
        for d in range(4):
            lo, hi = rW + 8 * pr + d, rW + 8 * pr + 4 + d
            e("v_perm_b32 v%d, v%d, v%d, s%d" % (vT + 2 * d, hi, lo, sPLO))
            e("v_perm_b32 v%d, v%d, v%d, s%d" % (vT + 2 * d + 1, hi, lo, sPHI))
        for k in range(8):
            e("v_dot2_f32_bf16 v%d, v%d, v%d, v%d" % (rACC + k, vT + k, rX + pr, rACC + k))
    e("s_lshl_b32 s%d, s%d, 11" % (sST + 8, sC)); e("s_add_u32 s%d, s%d, %d" % (sST + 8, sST + 8, LB + O_SCR))
    e("v_lshl_add_u32 v7, v%d, 5, s%d" % (vL, sST + 8))
    e("v_mov_b32 v2, 1")
    e("ds_write_b128 v7, %s" % vr(rACC, 4)); e("ds_write_b128 v7, %s offset:16" % vr(rACC + 4, 4))
    e("s_mov_b64 exec, 1"); e("ds_add_u32 v%d, v2 offset:%d" % (vLB, O_CNTQ)); e("s_mov_b64 exec, -1")
    stamp(1)
    def woload(raw, p):
        srd(sOD, p, 4718592)
        for i in range(8):
            if i < 4: so = sWO if i == 0 else sST + 5 + i
            else: so = sWO if i == 4 else sST + 1 + i
            e("buffer_load_dwordx4 %s, v%d, s[%d:%d], s%d offen offset:%d %s" % (vr(raw + 4 * i, 4), vAWO, sOD, sOD + 3, so, (i >> 2) * 1152, pol))
    lds_wait(vLB, O_QRDY, 1, csleep)
    e("s_add_u32 s%d, s%d, %#x" % (sTAG, sTAG, TAGINC))
    stamp(2)
    e("s_mov_b32 s%d, s%d" % (sT, sC)); e("s_lshl_b32 s%d, s%d, 14" % (sSL, sC)); e("s_mov_b32 s%d, 0" % sLAND)
    e("s_mov_b32 s%d, 0" % sB); e("s_mov_b32 s%d, 0" % sWI)
    call("L_begin")
    e("s_mov_b32 s%d, %d" % (sEND, NT_A)); call("L_tiles")
    call("L_dump")
    stamp(3)
    e("s_mov_b32 s%d, 1" % sB)
    lds_wait(vLB, O_QRDY, 2, csleep)
    call("L_begin")
    e("s_mov_b32 s%d, 0x7fffffff" % sEND); call("L_tiles")
    stamp(4); call("L_dump"); stamp(5)
    if woearly:
        e("s_cmp_lg_u32 s%d, 0" % sWI); e("s_cbranch_scc1 L_wodone")
    if wosplit:
        for i in range(1, 4): e("s_add_u32 s%d, s%d, %d" % (sST + 5 + i, sWO, i * 32 * 1152))
        woload(vRB if wosplit == 2 else vRA, 22 if wosplit == 2 else 12)
    if wowait == 1: lds_wait(vLB, O_PUB + 4, 1, 0)
    if wowait > 1: slp(wowait)
    if wosplit:
        for i in range(1, 4): e("s_add_u32 s%d, s%d, %d" % (sST + 5 + i, sWO, i * 32 * 1152))
        woload(vRA if wosplit == 2 else vRB, 12 if wosplit == 2 else 22)
    elif not nowo: call("L_woload", sRET2)
    e("L_wodone:")
    def woperm(raw, dst):
        for ee in range(8):
            for p in range(4):
                e("v_perm_b32 v%d, v%d, v%d, s%d" % (dst + 4 * ee + p, raw + 4 * (2 * p + 1) + ee // 2, raw + 4 * (2 * p) + ee // 2, sPHI if ee & 1 else sPLO))
    def proj(W, op, y, b):
        e("s_add_u32 s%d, s%d, %d" % (sST + 6, sH2, b * 256 * 1152))
        e("s_lshl_b32 s%d, s%d, 5" % (sST + 9, sCST)); e("s_add_u32 s%d, s%d, s%d" % (sST + 6, sST + 6, sST + 9))
        sp = lab("ps"); ok = lab("pok")
        e("%s:" % sp)
        e("ds_read_b32 v1, v%d offset:%d" % (vLB, O_OPR + 4 * b))
        e("ds_read_b128 %s, v4 offset:%d" % (vr(op, 4), O_OP + 64 * b))
        e("s_waitcnt lgkmcnt(1)")
        e("v_readfirstlane_b32 s%d, v1" % (sST + 8))
        e("s_cmp_lg_u32 s%d, 0" % (sST + 8)); e("s_cbranch_scc1 %s" % ok)
        bound(); e("s_branch %s" % sp)
        e("%s:" % ok)
        e("s_waitcnt lgkmcnt(0)")
        for ee in (0, 4, 1, 5, 2, 6, 3, 7):
            e("v_mfma_f32_16x16x32_bf16 %s, %s, %s, 0" % (vr(vV + 4 * ee, 4), vr(op, 4), vr(W + 4 * ee, 4)))
        e("s_nop 1")
        for r in range(4):
            e("v_cndmask_b32 v%d, v%d, v%d, s[%d:%d]" % (y + r, vV + 4 * r, vV + 16 + 4 * r, sMG, sMG + 1))
            if r < 3: e("s_nop 0")
        pack4(y + 4, y)
        e("s_mov_b32 exec_lo, s%d" % (sST + 7)); e("s_mov_b32 exec_hi, 0")
        e("buffer_store_dwordx4 %s, v%d, s[%d:%d], s%d offen sc1" % (vr(y + 4, 4), vAH2, sWSD, sWSD + 3, sST + 6))
        e("s_mov_b64 exec, -1")
    if aorder:
        e("v_and_b32 v4, 48, v%d" % vL); e("v_add_u32 v4, v4, v%d" % vLB)
        e("s_bfm_b32 s%d, s%d, 0" % (sST + 7, sCCNT)); e("s_mul_i32 s%d, s%d, 0x10001" % (sST + 7, sST + 7))
        e("v_mov_b32 v%d, s%d" % (vQ + 7, sTAG)); e("v_mov_b32 v%d, s%d" % (vQ + 15, sTAG))
        e("s_waitcnt vmcnt(8)")
        woperm(vRA, vO)
        e("s_waitcnt vmcnt(0)")
        woperm(vRB, vK)
        proj(vO, vS, vQ, 1)
        proj(vK, vS + 4, vQ + 8, 0)
    else:
        e("s_waitcnt vmcnt(%d)" % (0 if wosplit == 2 else 8))
        woperm(vRA, vO)
        e("s_mov_b32 s%d, 0" % sB)
        call("L_proj")
        e("s_waitcnt vmcnt(1)")
        woperm(vRB, vO)
        e("s_mov_b32 s%d, 1" % sB)
        call("L_proj")
    stamp(6); stamp_flush()
    e("s_endpgm")

    c("---- start a branch: Q fragments, empty running state")
    e("L_begin:")
    e("s_lshl_b32 s%d, s%d, 9" % (sST + 8, sB))
    e("v_add_u32 v1, s%d, v%d" % (sST + 8, vX))
    for k in range(4): e("ds_read_b128 %s, v1 offset:%d" % (vr(vQ + 4 * k, 4), O_QB + k * 64))
    e("v_mov_b32 v%d, 0xff61b1e6" % vM)
    e("v_mov_b32 v%d, 0" % vMC); e("v_mov_b32 v%d, 0" % vLS)
    for i in range(32): e("v_mov_b32 v%d, 0" % (vO + i))
    e("s_waitcnt lgkmcnt(0)")
    ret()

    c("---- tile loop: ring tiles t, t+3, ... while t < end and t < total")
    e("L_tiles:")
    e("s_cmp_ge_u32 s%d, s%d" % (sT, sEND)); e("s_cbranch_scc1 L_tiles_ret")
    e("L_tile:")
    jitter(3, 40)
    e("s_lshl_b32 s%d, s%d, 1" % (sNEED, sT)); e("s_add_u32 s%d, s%d, 1" % (sNEED, sNEED))
    e("v_add_u32 v%d, s%d, v%d" % (vAK, sSL, vAK0))
    e("v_add_u32 v%d, s%d, v%d" % (vAV, sSL, vAV0))
    for k in range(1, 4): e("v_xor_b32 v%d, %d, v%d" % (vAK + k, k << 6, vAK))
    for cg in range(1, 8): e("v_xor_b32 v%d, %d, v%d" % (vAV + cg, cg << 5, vAV))
    e("s_cmp_ge_u32 s%d, s%d" % (sLAND, sNEED)); e("s_cbranch_scc1 L_kok")
    e("L_kspin:")
    e("ds_read_b64 v[2:3], v%d offset:%d" % (vLB, O_LANDED))
    e("s_waitcnt lgkmcnt(0)")
    e("v_readfirstlane_b32 s%d, v2" % sLAND)
    e("v_readfirstlane_b32 s%d, v3" % (sST + 9))
    e("s_cmp_ge_u32 s%d, s%d" % (sLAND, sNEED))
    e("s_cselect_b32 s%d, 1, 0" % (sST + 8))
    e("s_min_u32 s%d, s%d, s%d" % (sEND, sEND, sST + 9))
    e("s_cmp_lg_u32 s%d, 0" % (sST + 8)); e("s_cbranch_scc1 L_kok")
    e("s_cmp_ge_u32 s%d, s%d" % (sT, sEND)); e("s_cbranch_scc1 L_tiles_ret")
    if woearly:
        e("s_and_b32 s%d, s%d, 0x80000000" % (sST + 9, sST + 9)); e("s_or_b32 s%d, s%d, s%d" % (sST + 9, sST + 9, sWI))
        e("s_cbranch_scc1 L_knowo")
        call("L_woload", sRET2)
        e("L_knowo:")
    bound(); slp(csleep); e("s_branch L_kspin")
    e("L_kok:")
    def vreads():
        for cg in range(8):
            for blk in range(2):
                e("ds_read_b64_tr_b16 %s, v%d offset:%d" % (vr(vV + 4 * cg + 2 * blk, 2), vAV + cg, blk * 4096))
    for k in range(4):
        for blk in range(2):
            e("ds_read_b128 %s, v%d offset:%d" % (vr(vK + 16 * blk + 4 * k, 4), vAK + k, blk * 4096))
    e("ds_read_b32 v2, v%d offset:%d" % (vLB, O_LANDED))
    e("s_add_u32 s%d, s%d, 1" % (sNEED, sNEED))
    e("s_add_u32 s%d, s%d, %d" % (sSL, sSL, 3 * 16384))
    e("s_cmp_ge_u32 s%d, %d" % (sSL, RING)); e("s_cselect_b32 s%d, %d, 0" % (sST + 8, RING)); e("s_sub_u32 s%d, s%d, s%d" % (sSL, sSL, sST + 8))
    e("s_add_u32 s%d, s%d, 3" % (sT, sT))
    e("v_mov_b32 v4, s%d" % sT)
    for k in range(4):
        e("s_waitcnt lgkmcnt(%d)" % (7 - 2 * k))
        for blk in range(2):
            e("v_mfma_f32_16x16x32_bf16 %s, %s, %s, %s" % (vr(vS + 4 * blk, 4), vr(vK + 16 * blk + 4 * k, 4), vr(vQ + 4 * k, 4), "0" if k == 0 else vr(vS + 4 * blk, 4)))
    e("s_waitcnt lgkmcnt(0)")
    e("v_readfirstlane_b32 s%d, v2" % sLAND)
    e("s_nop 2")
    e("s_cmp_ge_u32 s%d, s%d" % (sLAND, sNEED)); e("s_cbranch_scc0 L_soft")
    vreads()
    e("L_soft:")
    t = vT
    c("one score per lane: 32 keys x 2 heads")
    e("v_cndmask_b32 v%d, v%d, v%d, s[%d:%d]" % (t, vS, vS + 1, sM1, sM1 + 1))
    e("v_cndmask_b32 v%d, v%d, v%d, s[%d:%d]" % (t + 1, vS + 2, vS + 3, sM1, sM1 + 1))
    e("v_cndmask_b32 v%d, v%d, v%d, s[%d:%d]" % (t + 2, vS + 4, vS + 5, sM1, sM1 + 1))
    e("v_cndmask_b32 v%d, v%d, v%d, s[%d:%d]" % (t + 3, vS + 6, vS + 7, sM1, sM1 + 1))
    e("v_cndmask_b32 v%d, v%d, v%d, s[%d:%d]" % (t, t, t + 1, sM2, sM2 + 1))
    e("v_cndmask_b32 v%d, v%d, v%d, s[%d:%d]" % (t + 2, t + 2, t + 3, sM2, sM2 + 1))
    e("v_cndmask_b32 v%d, v%d, v%d, s[%d:%d]" % (t, t, t + 2, sM3, sM3 + 1))
    c("bf16(bf16(q.k) * Dh^-0.5), as the reference rounds them")
    e("v_cvt_pk_bf16_f32 v%d, v%d, v%d" % (t, t, t))
    e("v_and_b32 v%d, 0xffff0000, v%d" % (t, t))
    e("v_mul_f32 v%d, s%d, v%d" % (t, sSCALE, t))
    e("v_cvt_pk_bf16_f32 v%d, v%d, v%d" % (t, t, t))
    e("v_and_b32 v%d, 0xffff0000, v%d" % (t, t))
    e("v_cmp_gt_f32 vcc, v%d, v%d" % (t, vM))
    e("s_cbranch_vccnz L_newmax")
    e("L_maxok:")
    e("v_fma_f32 v%d, v%d, s%d, v%d" % (t, t, sLOG2E, vMC))
    e("v_exp_f32 v%d, v%d" % (t, t))
    e("s_cmp_ge_u32 s%d, s%d" % (sLAND, sNEED))
    e("v_add_f32 v%d, v%d, v%d" % (vLS, vLS, t))
    e("v_cvt_pk_bf16_f32 v%d, v%d, v%d" % (t, t, t))
    for p in range(4): e("v_and_b32 v%d, v%d, v%d" % (vP + p, t, vPM + p))
    e("s_cbranch_scc1 L_pv")
    e("L_vspin:")
    e("ds_read_b32 v2, v%d offset:%d" % (vLB, O_LANDED))
    e("s_waitcnt lgkmcnt(0)")
    e("v_readfirstlane_b32 s%d, v2" % sLAND)
    e("s_cmp_ge_u32 s%d, s%d" % (sLAND, sNEED)); e("s_cbranch_scc1 L_vok")
    bound(); e("s_branch L_vspin")
    e("L_vok:")
    vreads()
    e("L_pv:")
    for cg in range(8):
        e("s_waitcnt lgkmcnt(%d)" % (14 - 2 * cg))
        e("v_mfma_f32_16x16x32_bf16 %s, %s, %s, %s" % (vr(vO + 4 * cg, 4), vr(vP, 4), vr(vV + 4 * cg, 4), vr(vO + 4 * cg, 4)))
    ds1("ds_write_b32 v%d, v4 offset:%d" % (vANX, O_NEXT))
    e("s_cmp_lt_u32 s%d, s%d" % (sT, sEND)); e("s_cbranch_scc1 L_tile")
    e("L_tiles_ret:")
    ret()
    c("the running max rose: online-softmax rescale of l and O")
    e("L_newmax:")
    e("v_max_f32 v%d, v%d, v%d" % (t + 1, t, vM))
    for r in (2, 4, 8):
        e("s_nop 1"); e("v_max_f32_dpp v%d, v%d, v%d row_ror:%d row_mask:0xf bank_mask:0xf" % (t + 1, t + 1, t + 1, r))
    for sw in ("16", "32"):
        e("v_mov_b32 v%d, v%d" % (t + 2, t + 1)); e("s_nop 1")
        e("v_permlane%s_swap_b32 v%d, v%d" % (sw, t + 1, t + 2)); e("v_max_f32 v%d, v%d, v%d" % (t + 1, t + 1, t + 2))
    e("v_sub_f32 v%d, v%d, v%d" % (t + 2, vM, t + 1))
    e("v_mul_f32 v%d, s%d, v%d" % (t + 2, sLOG2E, t + 2))
    e("v_exp_f32 v%d, v%d" % (t + 2, t + 2))
    e("v_mov_b32 v%d, v%d" % (vM, t + 1))
    e("v_mul_f32 v%d, s%d, v%d" % (vMC, sLOG2E, t + 1))
    e("v_readlane_b32 s%d, v%d, 0" % (sAL, t + 2)); e("v_readlane_b32 s%d, v%d, 1" % (sAL + 1, t + 2))
    e("v_sub_f32 v%d, 0, v%d" % (vMC, vMC))
    e("v_mul_f32 v%d, v%d, v%d" % (vLS, vLS, t + 2))
    for i in range(16): e("v_pk_mul_f32 %s, %s, s[%d:%d]" % (vr(vO + 2 * i, 2), vr(vO + 2 * i, 2), sAL, sAL + 1))
    e("s_branch L_maxok")

    c("---- end of a branch: the wave with the last tile merges the three partials and publishes them")
    e("L_dump:")
    jitter(1, 30)
    a = vK
    vD = vV
    e("s_mul_i32 s%d, s%d, %d" % (sST + 8, sB, 3 * 1056))
    e("s_lshl_b32 s%d, s%d, 2" % (sST + 9, sB)); e("v_add_u32 v3, s%d, v%d" % (sST + 9, vLB))
    e("s_sub_u32 s%d, s%d, 2" % (sST + 7, sT))
    e("s_cmp_eq_u32 s%d, s%d" % (sST + 7, sEND)); e("s_cbranch_scc1 L_dm")
    e("s_mul_i32 s%d, s%d, 1056" % (sST + 9, sC)); e("s_add_u32 s%d, s%d, s%d" % (sST + 8, sST + 8, sST + 9))
    e("v_add_u32 v4, s%d, v%d" % (sST + 8, vAMD)); e("v_add_u32 v5, s%d, v%d" % (sST + 8, vAML))
    e("s_branch L_dr")
    e("L_dm:")
    e("s_cmp_eq_u32 s%d, 0" % sC); e("s_cselect_b32 s%d, 1056, 0" % (sST + 9)); e("s_add_u32 s%d, s%d, s%d" % (sST + 9, sST + 9, sST + 8))
    e("v_add_u32 v4, s%d, v%d" % (sST + 9, vAMD)); e("v_add_u32 v5, s%d, v%d" % (sST + 9, vAML))
    e("s_cmp_eq_u32 s%d, 2" % sC); e("s_cselect_b32 s%d, 1, 2" % (sST + 9)); e("s_mul_i32 s%d, s%d, 1056" % (sST + 9, sST + 9)); e("s_add_u32 s%d, s%d, s%d" % (sST + 9, sST + 9, sST + 8))
    e("v_add_u32 v%d, s%d, v%d" % (a + 16, sST + 9, vAMD)); e("v_add_u32 v%d, s%d, v%d" % (a + 17, sST + 9, vAML))
    def mreads():
        e("ds_read_b32 v%d, v3 offset:%d" % (a + 14, O_CNTM))
        e("ds_read_b64 %s, v5" % vr(a + 8, 2)); e("ds_read_b64 %s, v%d" % (vr(a + 10, 2), a + 17))
        e("ds_read_b128 %s, v4" % vr(a, 4)); e("ds_read_b128 %s, v%d" % (vr(a + 4, 4), a + 16))
    mreads()
    e("L_dr:")
    e("v_add_f32_dpp v7, v%d, v%d row_ror:2 row_mask:0xf bank_mask:0xf" % (vLS, vLS))
    e("v_mov_b32_dpp v%d, v%d quad_perm:[0,0,0,0] row_mask:0x3 bank_mask:0xf" % (a + 12, vM))
    e("v_mov_b32 v2, 1")
    e("v_add_f32_dpp v7, v7, v7 row_ror:4 row_mask:0xf bank_mask:0xf")
    e("v_mov_b32_dpp v%d, v%d quad_perm:[1,1,1,1] row_mask:0xc bank_mask:0xf" % (a + 12, vM))
    pk = ["v_pk_add_f32 %s, %s, %s" % (vr(vO + 4 * cg, 2), vr(vO + 4 * cg, 2), vr(vO + 4 * cg + 2, 2)) for cg in range(8)]
    e(pk[0]); e("v_add_f32_dpp v7, v7, v7 row_ror:8 row_mask:0xf bank_mask:0xf")
    e(pk[1]); e("v_mov_b32 v1, v7"); e(pk[2]); e(pk[3])
    e("v_permlane16_swap_b32 v7, v1"); e(pk[4]); e("v_add_f32 v7, v7, v1"); e(pk[5]); e("v_mov_b32 v1, v7"); e(pk[6]); e(pk[7])
    e("v_permlane32_swap_b32 v7, v1")
    for cg in range(8):
        e("v_permlane32_swap_b32 v%d, v%d" % (vO + 4 * cg, vO + 4 * cg + 1))
        if cg == 0: e("v_add_f32 v7, v7, v1")
        if cg == 3: e("v_mov_b32_dpp v%d, v7 quad_perm:[0,0,0,0] row_mask:0x3 bank_mask:0xf" % (a + 13))
        if cg == 6: e("v_mov_b32_dpp v%d, v7 quad_perm:[1,1,1,1] row_mask:0xc bank_mask:0xf" % (a + 13))
    for cg in range(8): e("v_add_f32 v%d, v%d, v%d" % (vO + 4 * cg, vO + 4 * cg, vO + 4 * cg + 1))
    for c2 in range(4): e("v_permlane16_swap_b32 v%d, v%d" % (vO + 8 * c2, vO + 8 * c2 + 4))
    for c2 in range(4): e("v_add_f32 v%d, v%d, v%d" % (vD + c2, vO + 8 * c2, vO + 8 * c2 + 4))
    c("lane = (head, x): O[dim = r*32 + x] in four registers")
    e("s_cmp_eq_u32 s%d, s%d" % (sST + 7, sEND)); e("s_cbranch_scc1 L_merge")
    e("ds_write_b64 v5, %s" % vr(a + 12, 2))
    e("ds_write_b128 v4, %s" % vr(vD, 4))
    e("s_mov_b64 exec, 1"); e("ds_add_u32 v3, v2 offset:%d" % O_CNTM); e("s_mov_b64 exec, -1")
    ret()
    e("L_mretry:")
    bound()
    mreads()
    e("L_merge:")
    e("s_lshl_b32 s%d, s%d, 8" % (sST + 9, sB)); e("s_add_u32 s%d, s%d, s2" % (sST + 9, sST + 9))
    e("s_lshl_b32 s%d, s%d, 10" % (sST + 9, sST + 9)); e("s_add_u32 s%d, s%d, %d" % (sST + 9, sST + 9, WS_H1))
    e("s_waitcnt lgkmcnt(2)")
    e("v_readfirstlane_b32 s%d, v%d" % (sST + 8, a + 14))
    e("v_max3_f32 v6, v%d, v%d, v%d" % (a + 8, a + 10, a + 12))
    e("s_cmp_lt_u32 s%d, 2" % (sST + 8)); e("s_cbranch_scc1 L_mretry")
    for r in (8, 10, 12): e("v_sub_f32 v%d, v%d, v6" % (a + r, a + r))
    for r in (8, 10, 12): e("v_mul_f32 v%d, s%d, v%d" % (a + r, sLOG2E, a + r))
    for r in (12, 8, 10): e("v_exp_f32 v%d, v%d" % (a + r, a + r))
    e("v_mul_f32 v7, v%d, v%d" % (a + 12, a + 13))
    for d in range(4): e("v_mul_f32 v%d, v%d, v%d" % (vD + d, vD + d, a + 12))
    e("v_fmac_f32 v7, v%d, v%d" % (a + 8, a + 9)); e("v_fmac_f32 v7, v%d, v%d" % (a + 10, a + 11))
    e("s_waitcnt lgkmcnt(0)")
    e("v_rcp_f32 v1, v7"); e("v_log_f32 v%d, v7" % (vD + 7))
    for d in range(4): e("v_fmac_f32 v%d, v%d, v%d" % (vD + d, a + d, a + 8))
    e("v_fmac_f32 v%d, s%d, v6" % (vD + 7, sLOG2E))
    for d in range(4): e("v_fmac_f32 v%d, v%d, v%d" % (vD + d, a + 4 + d, a + 10))
    for d in range(4): e("v_mul_f32 v%d, v%d, v1" % (vD + d, vD + d))
    c("16-byte piece = four values of o/l (top 24 bits each) + log2-sum-exp")
    pack4(vD + 4, vD)
    e("buffer_store_dwordx4 %s, v%d, s[%d:%d], s%d offen sc1" % (vr(vD + 4, 4), vL16, sWSD, sWSD + 3, sST + 9))
    e("ds_write_b32 v3, v2 offset:%d" % O_PUB)
    ret()

    c("---- wo blocks of both branches (raw rows)")
    e("L_woload:")
    e("s_mov_b32 s%d, 1" % sWI)
    for i in range(1, 4): e("s_add_u32 s%d, s%d, %d" % (sST + 5 + i, sWO, i * 32 * 1152))
    if aorder: woload(vRA, 22); woload(vRB, 12)
    else: woload(vRA, 12); woload(vRB, 22)
    ret(sRET2)

    c("---- project the combined 32 dims onto this wave's columns and publish the partial row")
    e("L_proj:")
    jitter(1, 30)
    e("s_lshl_b32 s%d, s%d, 2" % (sST + 9, sB)); e("v_add_u32 v3, s%d, v%d" % (sST + 9, vLB))
    e("s_lshl_b32 s%d, s%d, 6" % (sST + 9, sB)); e("v_and_b32 v4, 48, v%d" % vL); e("v_add3_u32 v4, v4, s%d, v%d" % (sST + 9, vLB))
    e("s_mul_i32 s%d, s%d, %d" % (sST + 6, sB, 256 * 1152)); e("s_add_u32 s%d, s%d, s%d" % (sST + 6, sST + 6, sH2))
    e("s_lshl_b32 s%d, s%d, 5" % (sST + 9, sCST)); e("s_add_u32 s%d, s%d, s%d" % (sST + 6, sST + 6, sST + 9))
    e("s_bfm_b32 s%d, s%d, 0" % (sST + 7, sCCNT)); e("s_mul_i32 s%d, s%d, 0x10001" % (sST + 7, sST + 7))
    e("v_mov_b32 v%d, s%d" % (vK + 11, sTAG))
    e("L_pspin:")
    e("ds_read_b32 v1, v3 offset:%d" % O_OPR)
    e("ds_read_b128 %s, v4 offset:%d" % (vr(vK, 4), O_OP))
    e("s_waitcnt lgkmcnt(1)")
    e("v_readfirstlane_b32 s%d, v1" % (sST + 8))
    e("s_cmp_lg_u32 s%d, 0" % (sST + 8)); e("s_cbranch_scc1 L_pok")
    bound(); e("s_branch L_pspin")
    e("L_pok:")
    e("s_waitcnt lgkmcnt(0)")
    for ee in (0, 4, 1, 5, 2, 6, 3, 7):
        e("v_mfma_f32_16x16x32_bf16 %s, %s, %s, 0" % (vr(vV + 4 * ee, 4), vr(vK, 4), vr(vO + 4 * ee, 4)))
    e("s_nop 1")
    for r in range(4):
        e("v_cndmask_b32 v%d, v%d, v%d, s[%d:%d]" % (vK + 4 + r, vV + 4 * r, vV + 16 + 4 * r, sMG, sMG + 1))
        if r < 3: e("s_nop 0")
    pack4(vK + 8, vK + 4)
    e("s_mov_b32 exec_lo, s%d" % (sST + 7)); e("s_mov_b32 exec_hi, 0")
    e("buffer_store_dwordx4 %s, v%d, s[%d:%d], s%d offen sc1" % (vr(vK + 8, 4), vAH2, sWSD, sWSD + 3, sST + 6))
    e("s_mov_b64 exec, -1")
    ret()

    c("==== loader")
    e("L_loader:")
    if prio: e("s_setprio %d" % prio)
    e("v_lshrrev_b32 v1, 4, v%d" % vL)
    e("v_lshlrev_b32 v2, 1, v1")
    e("v_xor_b32 v2, v2, v%d" % vL)
    e("v_and_b32 v2, 15, v2")
    e("v_lshlrev_b32 v2, 4, v2")
    e("v_lshl_add_u32 v2, v1, 8, v2")
    e("v_xor_b32 v3, 0x80, v2")
    e("s_lshl_b32 s%d, s%d, 23" % (sBASE, sH))
    e("s_add_u32 s%d, s%d, 0x700000" % (sBASE, sBASE))
    e("s_mov_b32 s%d, 0xfffff" % sMASK)
    e("s_mul_i32 s%d, s%d, %d" % (sLIN, sH, phaseA * 1024))
    e("s_lshl_b32 s%d, s%d, 13" % (sTMP, sS))
    e("s_add_u32 s%d, s%d, s%d" % (sLIN, sLIN, sTMP))
    e("s_and_b32 s%d, s%d, s%d" % (sOFF, sLIN, sMASK))
    e("s_add_u32 s%d, s%d, s%d" % (sOFF, sOFF, sBASE))
    e("s_mul_i32 s%d, s%d, %d" % (sPH, sH, phaseB * 1024))
    e("s_mov_b32 s%d, 0" % sSLOT)
    e("s_mov_b32 s%d, 0" % sTI)
    e("s_mov_b32 s%d, %d" % (sFREE, NTS))
    e("s_lshl_b32 s%d, s%d, 8" % (sTMP, sH)); e("s_add_u32 s%d, s%d, %d" % (sTMP, sTMP, WS_CTR))
    e("s_waitcnt lgkmcnt(0)")
    srd(sKD, 6, "0x8000000"); srd(sVD, 8, "0x8000000")
    e("s_add_u32 s%d, s28, s%d" % (sCTR, sTMP)); e("s_addc_u32 s%d, s29, 0" % (sCTR + 1))
    e("s_load_dword s%d, s[28:29], %d" % (sTAG, WS_NONCE))
    def issue(d, mid=None, paced=False):
        e("s_mov_b32 m0, s%d" % sSLOT)
        e("s_add_u32 s%d, s%d, 4096" % (sOFF2, sOFF))
        for i in range(8):
            if i == 4:
                e("s_add_u32 m0, s%d, 4096" % sSLOT)
                e("s_add_u32 s%d, s%d, 8192" % (sSLOT, sSLOT))
                if mid is not None: e("s_waitcnt vmcnt(%d)" % mid)
            if paced and i and WL[i] < 63: e("s_waitcnt vmcnt(%d)" % WL[i])
            if paced and i and i == pubi: ds1("ds_max_u32 v%d, v4 offset:%d" % (vLB, O_LANDED))
            e("buffer_load_dwordx4 v%d, s[%d:%d], s%d offen offset:%d %s lds" % (2 + (i & 1), d, d + 3, sOFF if i < 4 else sOFF2, (i & 3) * 1024, pol))
        if d == sVD:
            e("s_cmp_eq_u32 s%d, %d" % (sSLOT, RING)); e("s_cselect_b32 s%d, 0, s%d" % (sSLOT, sSLOT))
    def req():
        e("s_mov_b32 s%d, 1" % sTK); e("s_atomic_add s%d, s[%d:%d], 0x0 glc" % (sTK, sCTR, sCTR + 1))
    def advance0():
        e("s_add_u32 s%d, s%d, 1" % (sTI, sTI))
        e("s_add_u32 s%d, s%d, 0x20000" % (sLIN, sLIN))
    def static_off():
        e("s_and_b32 s%d, s%d, s%d" % (sOFF, sLIN, sMASK))
        if rot:
            e("s_mul_i32 s%d, s%d, %d" % (sTMP2, sTI, rot << 13)); e("s_add_u32 s%d, s%d, s%d" % (sTMP2, sTMP2, sOFF))
            e("s_and_b32 s%d, s%d, 0x1e000" % (sTMP2, sTMP2))
            e("s_and_b32 s%d, s%d, 0xfffe1fff" % (sOFF, sOFF)); e("s_or_b32 s%d, s%d, s%d" % (sOFF, sOFF, sTMP2))
        e("s_add_u32 s%d, s%d, s%d" % (sOFF, sOFF, sBASE))
    for j in range(D):
        if j == P0: e("s_barrier")
        if j and j % 2 == 0: advance0(); static_off()
        issue(sKD if j % 2 == 0 else sVD)
    if P0 >= D: e("s_barrier")
    def step(isK):
        if isK: advance0()
        e("s_lshl_b32 s%d, s%d, 1" % (sTMP, sTI))
        e("s_add_i32 s%d, s%d, %d" % (sTMP, sTMP, (0 if isK else 1) - D + 1))
        e("v_mov_b32 v4, s%d" % sTMP)
        e("s_waitcnt vmcnt(%d)" % (WK if isK else WN))
        if isK and stamps == 2:
            e("s_waitcnt lgkmcnt(0)")
            e("s_sub_u32 s%d, s%d, 1" % (sTMP2, sTI)); e("s_and_b32 m0, s%d, 63" % sTMP2)
            l = lab("tr"); l2 = lab("tr2")
            e("s_cmp_ge_u32 s%d, 64" % sTMP2); e("s_cbranch_scc1 %s" % l)
            e("v_writelane_b32 v241, s98, m0"); e("s_branch %s" % l2)
            e("%s:" % l); e("v_writelane_b32 v242, s98, m0"); e("%s:" % l2)
            e("s_memrealtime s[98:99]")
        if pubi == 0: ds1("ds_max_u32 v%d, v4 offset:%d" % (vLB, O_LANDED))
        if isK:
            c("the ring slots of tile t - %d must have been consumed" % NTS)
            e("s_cmp_lt_u32 s%d, s%d" % (sTI, sFREE)); e("s_cbranch_scc1 L_free")
            e("L_fspin:")
            e("ds_read_b96 v[8:10], v%d offset:%d" % (vLB, O_NEXT))
            e("s_waitcnt lgkmcnt(0)")
            e("v_min3_u32 v8, v8, v9, v10")
            e("s_nop 0")
            e("v_readfirstlane_b32 s%d, v8" % sFREE)
            e("s_add_u32 s%d, s%d, %d" % (sFREE, sFREE, NTS))
            e("s_cmp_lt_u32 s%d, s%d" % (sTI, sFREE)); e("s_cbranch_scc1 L_free")
            e("s_lshl_b32 s%d, s%d, 1" % (sTMP, sTI))
            e("v_mov_b32 v5, s%d" % sTMP)
            e("s_waitcnt vmcnt(0)")
            ds1("ds_max_u32 v%d, v5 offset:%d" % (vLB, O_LANDED))
            bound(); slp(1); e("s_branch L_fspin")
            e("L_free:")
            if dyn:
                e("s_cmp_lt_u32 s%d, %d" % (sTI, NSTAT - 1)); e("s_cbranch_scc1 L_stat")
                e("s_cmp_lt_u32 s%d, %d" % (sTI, NSTAT)); e("s_cbranch_scc1 L_first")
                c("last tiles of the head: taken from the head group's shared counter")
                e("s_waitcnt lgkmcnt(0)")
                e("s_cmp_ge_u32 s%d, %d" % (sTK, NDYN)); e("s_cbranch_scc1 L_ld_drain")
                e("s_lshl_b32 s%d, s%d, 13" % (sOFF, sTK))
                req()
                e("s_add_u32 s%d, s%d, s%d" % (sOFF, sOFF, sPH))
                e("s_add_u32 s%d, s%d, %d" % (sOFF, sOFF, nstatB * 0x20000))
                e("s_and_b32 s%d, s%d, s%d" % (sOFF, sOFF, sMASK))
                e("s_add_u32 s%d, s%d, s%d" % (sOFF, sOFF, sBASE))
                e("s_branch L_go")
                e("L_first:")
                req()
                e("L_stat:")
            else:
                e("s_cmp_ge_u32 s%d, %d" % (sTI, NT)); e("s_cbranch_scc1 L_ld_drain")
            e("s_cmp_lg_u32 s%d, %d" % (sTI, NT_A)); e("s_cbranch_scc1 L_nosw")
            c("branch A window done, continue with branch B")
            e("s_mov_b32 s%d, s16" % sKD); e("s_mov_b32 s%d, s17" % (sKD + 1))
            e("s_mov_b32 s%d, s18" % sVD); e("s_mov_b32 s%d, s19" % (sVD + 1))
            e("s_lshl_b32 s%d, s%d, 23" % (sBASE, sH))
            e("s_mov_b32 s%d, 0x7fffff" % sMASK)
            e("s_lshl_b32 s%d, s%d, 13" % (sTMP, sS))
            e("s_add_u32 s%d, s%d, s%d" % (sLIN, sPH, sTMP))
            e("L_nosw:")
            static_off()
            e("L_go:")
        issue(sKD if isK else sVD, WH, bool(WL))
    e("L_ld_loop:")
    jitter(4, 40)
    if D % 2: step(False); step(True)
    else: step(True); step(False)
    e("s_branch L_ld_loop")
    e("L_ld_drain:")
    e("v_mov_b32 v5, s%d" % sTI)
    e("ds_write_b32 v%d, v5 offset:%d" % (vLB, O_TOTAL))
    e("s_lshl_b32 s%d, s%d, 1" % (sTMP, sTI))
    for k in range(D - 2 + (1 if pubi else 0), -1, -1):
        e("s_sub_u32 s%d, s%d, %d" % (sTMP2, sTMP, k))
        e("v_mov_b32 v4, s%d" % sTMP2)
        e("s_waitcnt vmcnt(%d)" % (k * 8))
        ds1("ds_max_u32 v%d, v4 offset:%d" % (vLB, O_LANDED))
    if stamps: e("v_writelane_b32 v%d, s%d, 14" % (NV, sTI)); e("v_writelane_b32 v%d, 0, 15" % NV)
    stamp(1)
    if prio: e("s_setprio 0")
    c("final reduction roles: workgroups 0..35 branch B, 64..99 branch A")
    e("s_mov_b32 s%d, 1" % sB); e("s_mov_b32 s%d, s2" % sRJ)
    e("s_cmp_lt_u32 s2, %d" % NRED); e("s_cbranch_scc1 L_reduce")
    e("s_mov_b32 s%d, 0" % sB); e("s_sub_u32 s%d, s2, %d" % (sRJ, REDA))
    e("s_cmp_lt_u32 s%d, %d" % (sRJ, NRED)); e("s_cbranch_scc1 L_reduce")
    e("L_ld_done:")
    if diagspin:
        e("L_dspin:"); e("s_memrealtime s[100:101]"); e("s_waitcnt lgkmcnt(0)"); e("s_sub_u32 s100, s100, s98")
        e("s_cmp_lt_u32 s100, %d" % diagspin); e("s_cbranch_scc1 L_dspin")
    stamp(2); stamp_flush()
    if stamps == 2:
        e("s_add_u32 s44, s28, 0x11000000"); e("s_addc_u32 s45, s29, 0")
        e("s_lshl_b32 s46, s2, 9"); e("v_lshl_add_u32 v1, v%d, 2, s46" % vL)
        e("global_store_dword v1, v241, s[44:45]"); e("global_store_dword v1, v242, s[44:45] offset:256")
    e("L_end:")
    e("s_endpgm")
    c("---- sum 128 partial rows for 16 output columns")
    a = vK
    e("L_reduce:")
    jitter(1, 40)
    srd(sWSD, 28, WS_SIZE); srd(sOUTD, 24, 2304)
    e("v_lshrrev_b32 v1, 2, v%d" % vL); e("v_mul_u32_u24 v1, 1152, v1"); e("v_and_b32 v2, 3, v%d" % vL); e("v_lshl_add_u32 v1, v2, 4, v1")
    e("s_cmp_ge_u32 s%d, 18" % sRJ); e("s_cselect_b32 s%d, %d, 0" % (sST + 8, 128 * 1152 - 18 * 64))
    e("s_lshl_b32 s%d, s%d, 6" % (sST + 9, sRJ)); e("s_add_u32 s%d, s%d, s%d" % (sST + 8, sST + 8, sST + 9))
    e("s_mul_i32 s%d, s%d, %d" % (sST + 9, sB, 256 * 1152)); e("s_add_u32 s%d, s%d, s%d" % (sST + 8, sST + 8, sST + 9))
    e("s_add_u32 s%d, s%d, %d" % (sST + 8, sST + 8, WS_H2))
    e("s_mul_i32 s%d, s%d, 1152" % (sST + 6, sB)); e("s_lshl_b32 s%d, s%d, 5" % (sST + 7, sRJ)); e("s_add_u32 s%d, s%d, s%d" % (sST + 6, sST + 6, sST + 7))
    c("column = c4*4 + e(row): the lane rows end up holding e = 0,2,1,3")
    e("v_lshrrev_b32 v5, 5, v%d" % vL); e("v_bfe_u32 v4, v%d, 4, 1" % vL)
    e("v_lshl_add_u32 v5, v4, 1, v5"); e("v_lshl_add_u32 v5, v2, 2, v5"); e("v_lshlrev_b32 v5, 1, v5")
    lds_wait(vLB, O_OPR + 4, 1, 1, tmp=sST + 9, dst=6)
    e("s_add_u32 s%d, s%d, %#x" % (sTAG, sTAG, TAGINC))
    x0, y0 = a + 8, a + 40
    nset = 2 if pipe2 else 1
    def r1issue(x):
        e("s_mov_b32 s%d, s%d" % (sST + 9, sST + 8))
        for i in range(8):
            e("buffer_load_dwordx4 %s, v1, s[%d:%d], s%d offen sc1" % (vr(x + 4 * i, 4), sWSD, sWSD + 3, sST + 9))
            if i < 7: e("s_add_u32 s%d, s%d, %d" % (sST + 9, sST + 9, 16 * 1152))
    def r1check(x):
        for i in range(8):
            r = x + 4 * i
            e("s_waitcnt vmcnt(%d)" % (8 * nset - 1 - i))
            if i == 0: e("v_xor_b32 v3, s%d, v%d" % (sTAG, r + 3))
            else: e("v_bitop3_b32 v3, v3, v%d, s%d bitop3:0xf6" % (r + 3, sTAG))
            e("v_lshlrev_b32 v%d, 8, v%d" % (r + 3, r + 2))
            e("v_alignbit_b32 v%d, v%d, v%d, 16" % (r + 2, r + 1, r + 2))
            e("v_alignbit_b32 v%d, v%d, v%d, 8" % (r + 1, r, r + 1))
            if i:
                e("v_pk_add_f32 %s, %s, %s" % (vr(x + 2, 2), vr(x + 2, 2), vr(r + 2, 2)))
                e("v_pk_add_f32 %s, %s, %s" % (vr(x, 2), vr(x, 2), vr(r, 2)))
        e("v_cmp_ne_u32 vcc, 0, v3")
    def r1head(x):
        e("s_nop 0")
        for i in range(4): e("v_add_f32_dpp v%d, v%d, v%d row_ror:4 row_mask:0xf bank_mask:0xf" % (a + i, x + i, x + i))
    if pipe2:
        r1issue(x0)
        e("s_mov_b64 vcc, -1")
        slp(pd2)
        e("s_branch L_r1okx")
        e("L_r1spin:")
        r1issue(y0); r1check(x0)
        e("s_cbranch_vccz L_r1okx")
        r1issue(x0); r1check(y0)
        e("s_cbranch_vccz L_r1oky")
        bound(); e("s_branch L_r1spin")
        e("L_r1oky:")
        r1head(y0); e("s_branch L_r1tail")
    else:
        e("s_mov_b64 vcc, -1")
        e("s_branch L_r1okx")
        e("L_r1spin:")
        r1issue(x0); r1check(x0)
        e("s_cbranch_vccz L_r1okx")
        bound(); slp(gsleep); e("s_branch L_r1spin")
    e("L_r1okx:")
    r1head(x0)
    e("L_r1tail:")
    for i in range(4): e("v_add_f32_dpp v%d, v%d, v%d row_ror:8 row_mask:0xf bank_mask:0xf" % (a + i, a + i, a + i))
    e("s_nop 0")
    e("v_permlane32_swap_b32 v%d, v%d" % (a, a + 1)); e("v_permlane32_swap_b32 v%d, v%d" % (a + 2, a + 3))
    e("v_add_f32 v%d, v%d, v%d" % (a, a, a + 1)); e("v_add_f32 v%d, v%d, v%d" % (a + 2, a + 2, a + 3))
    e("s_nop 1")
    e("v_permlane16_swap_b32 v%d, v%d" % (a, a + 2))
    e("v_add_f32 v%d, v%d, v%d" % (a, a, a + 2))
    e("v_cvt_pk_bf16_f32 v%d, v%d, v%d" % (a, a, a))
    e("s_cbranch_vccnz L_r1spin")
    e("s_mov_b32 exec_lo, 0x000f000f"); e("s_mov_b32 exec_hi, 0x000f000f")
    e("buffer_store_short v%d, v5, s[%d:%d], s%d offen sc1" % (a, sOUTD, sOUTD + 3, sST + 6))
    e("s_mov_b64 exec, -1")
    c("every workgroup has read the tag word by now: advance it for the next launch")
    e("s_cmp_lg_u32 s2, 0"); e("s_cbranch_scc1 L_ld_done")
    e("v_mov_b32 v1, s%d" % sTAG); e("v_mov_b32 v2, %d" % WS_NONCE)
    e("s_mov_b64 exec, 1"); e("buffer_store_dword v1, v2, s[%d:%d], 0 offen sc1" % (sWSD, sWSD + 3)); e("s_mov_b64 exec, -1")
    e("s_branch L_ld_done")

    c("==== service wave")
    e("L_service:")
    rW = 24
    vAH1 = 8
    e("v_mov_b32 v2, 0"); e("v_mov_b32 v3, -1"); e("v_mov_b32 v4, 0"); e("v_mov_b32 v5, 1"); e("v_mov_b32 v6, 2")
    for i in range(4): e("v_mov_b32 v%d, 0" % (12 + i))
    e("ds_write_b64 v%d, v[2:3] offset:%d" % (vLB, O_LANDED))
    e("ds_write_b96 v%d, v[4:6] offset:%d" % (vLB, O_NEXT))
    e("ds_write_b128 v%d, v[12:15] offset:32" % vLB)
    e("ds_write_b128 v%d, v[12:15] offset:48" % vLB)
    e("v_lshlrev_b32 v7, 4, v%d" % vL)
    for i in range(4): e("v_mov_b32 v%d, -1" % (16 + i))
    e("s_lshl_b32 s%d, s2, 10" % (sST + 5)); e("s_add_u32 s%d, s%d, %d" % (sST + 5, sST + 5, WS_H1)); e("s_add_u32 s%d, s%d, %d" % (sST + 6, sST + 5, 256 * 1024))
    e("s_waitcnt lgkmcnt(0)")
    e("s_load_dword s%d, s[28:29], %d" % (sTAG, WS_NONCE))
    srd(sWSD, 28, WS_SIZE)
    if dyn:
        e("s_cmp_lg_u32 s%d, 0" % sS); e("s_cbranch_scc1 L_noz")
        e("s_lshl_b32 s%d, s%d, 8" % (sST + 7, sH)); e("s_add_u32 s%d, s%d, %d" % (sST + 7, sST + 7, WS_CTR))
        e("s_mov_b64 exec, 1"); e("buffer_store_dword v2, v2, s[%d:%d], s%d offen sc1" % (sWSD, sWSD + 3, sST + 7)); e("s_mov_b64 exec, -1")
        e("L_noz:")
    if not clr0: e("s_barrier")
    c("mark this workgroup's two split records empty (all-ones words never occur in a published record)")
    for so in (sST + 5, sST + 6):
        e("buffer_store_dwordx4 v[16:19], v7, s[%d:%d], s%d offen sc1" % (sWSD, sWSD + 3, so))
    if clr0: e("s_barrier")
    e("s_mov_b32 s%d, %#x" % (sLOG2E, LOG2E))
    packsel()
    e("v_and_b32 v5, 15, v%d" % vL); e("v_lshrrev_b32 v6, 4, v%d" % vL)
    e("v_lshlrev_b32 v5, 10, v5"); e("v_lshl_add_u32 v%d, v6, 5, v5" % vAH1)
    e("v_mul_u32_u24 v10, %d, v6" % (6 * 256)); e("v_and_b32 v11, 15, v%d" % vL); e("v_lshl_add_u32 v10, v11, 4, v10"); e("v_add_u32 v10, v10, v%d" % vLB)
    c("q piece (16 B) = four partial sums (top 24 bits each) + tag; 256 B per workgroup")
    e("s_lshl_b32 s%d, s%d, 12" % (sST + 10, sH))
    e("s_lshl_b32 s%d, s%d, 8" % (sST + 9, sS))
    e("s_add_u32 s%d, s%d, s%d" % (sST + 9, sST + 10, sST + 9))
    jitter(1, 60)
    lds_wait(vLB, O_CNTQ, 3, csleep)
    for r in range(6): e("ds_read_b128 %s, v10 offset:%d" % (vr(rW + 4 * r, 4), O_SCR + r * 256))
    e("s_add_u32 s%d, s%d, %#x" % (sTAG, sTAG, TAGINC))
    e("v_mov_b32 v%d, s%d" % (rW + 27, sTAG))
    e("s_waitcnt lgkmcnt(0)")
    for dst, src in ((0, 3), (1, 4), (2, 5), (0, 1), (0, 2)):
        for hh in range(2): e("v_pk_add_f32 %s, %s, %s" % (vr(rW + 4 * dst + 2 * hh, 2), vr(rW + 4 * dst + 2 * hh, 2), vr(rW + 4 * src + 2 * hh, 2)))
    for sw in ("16", "32"):
        for d in range(4): e("v_mov_b32 v%d, v%d" % (rW + 4 + d, rW + d))
        for d in range(4): e("v_permlane%s_swap_b32 v%d, v%d" % (sw, rW + d, rW + 4 + d))
        for hh in range(2): e("v_pk_add_f32 %s, %s, %s" % (vr(rW + 2 * hh, 2), vr(rW + 2 * hh, 2), vr(rW + 4 + 2 * hh, 2)))
    for d in range(4): e("v_add_u32 v%d, 0x80, v%d" % (rW + d, rW + d))
    pack4(rW + 24, rW)
    e("s_waitcnt vmcnt(0)")
    e("s_mov_b64 exec, 0xffff")
    e("buffer_store_dwordx4 %s, v7, s[%d:%d], s%d offen sc1" % (vr(rW + 24, 4), sWSD, sWSD + 3, sST + 9))
    e("s_mov_b64 exec, -1")
    stamp(1)
    rR = rW + 32
    def qgather(b):
        e("L_qspin%d:" % b)
        for j in range(2):
            e("buffer_load_dwordx4 %s, v7, s[%d:%d], s%d offen offset:%d sc1" % (vr(rR + 4 * j, 4), sWSD, sWSD + 3, sST + 10, (2 * j + b) * 1024))
        for j in range(2):
            r = rR + 4 * j
            e("s_waitcnt vmcnt(%d)" % (1 - j))
            if j == 0: e("v_xor_b32 v4, s%d, v%d" % (sTAG, r + 3))
            else: e("v_bitop3_b32 v4, v4, v%d, s%d bitop3:0xf6" % (r + 3, sTAG))
            e("v_lshlrev_b32 v%d, 8, v%d" % (r + 3, r + 2))
            e("v_alignbit_b32 v%d, v%d, v%d, 16" % (r + 2, r + 1, r + 2))
            e("v_alignbit_b32 v%d, v%d, v%d, 8" % (r + 1, r, r + 1))
            for d in range(3): e("v_and_b32 v%d, 0xffffff00, v%d" % (r + d, r + d))
        e("v_cmp_ne_u32 vcc, 0, v4")
        e("v_pk_add_f32 %s, %s, %s" % (vr(rR, 2), vr(rR, 2), vr(rR + 4, 2)))
        e("v_pk_add_f32 %s, %s, %s" % (vr(rR + 2, 2), vr(rR + 2, 2), vr(rR + 6, 2)))
        e("s_cbranch_vccz L_qready%d" % b)
        bound(); slp(gsleep); e("s_branch L_qspin%d" % b)
        e("L_qready%d:" % b)
        e("v_cvt_pk_bf16_f32 v%d, v%d, v%d" % (rR, rR, rR + 1)); e("v_cvt_pk_bf16_f32 v%d, v%d, v%d" % (rR + 1, rR + 2, rR + 3))
        e("v_lshl_add_u32 v4, v%d, 3, v%d" % (vL, vLB))
        e("v_mov_b32 v1, %d" % (b + 1))
        e("ds_write_b64 v4, %s offset:%d" % (vr(rR, 2), O_QB + b * 512))
        e("ds_write_b32 v%d, v1 offset:%d" % (vLB, O_QRDY))
    qgather(0)
    stamp(2)
    slp(bdelay)
    qgather(1)
    e("s_mov_b32 s%d, 0" % sB)
    e("L_svc_branch:")
    jitter(1, 40)
    e("s_lshl_b32 s%d, s%d, 2" % (sST + 2, sB)); e("v_add_u32 v3, s%d, v%d" % (sST + 2, vLB))
    e("s_lshl_b32 s%d, s%d, 6" % (sST + 2, sB)); e("v_and_b32 v13, 48, v%d" % vL); e("v_add3_u32 v13, v13, s%d, v%d" % (sST + 2, vLB))
    e("s_lshl_b32 s%d, s%d, 4" % (sST + 4, sB)); e("s_add_u32 s%d, s%d, s%d" % (sST + 4, sST + 4, sH))
    e("s_lshl_b32 s%d, s%d, 14" % (sST + 4, sST + 4)); e("s_add_u32 s%d, s%d, %d" % (sST + 4, sST + 4, WS_H1))
    e("s_and_b32 s%d, s%d, 7" % (sST + 6, sS)); e("s_lshl_b32 s%d, s%d, 7" % (sST + 6, sST + 6))
    e("s_add_u32 s%d, s%d, s%d" % (sST + 4, sST + 4, sST + 6))
    e("s_cmp_lg_u32 s%d, 0" % sB); e("s_cbranch_scc1 L_svc_b")
    if adefer > 0: lds_wait(vLB, O_LANDED, adefer, 16)
    elif adefer < 0: lds_wait(vLB, O_TOTAL, 0, 4, cmp="ge_i32")
    e("L_svc_b:")
    lds_wait(3, O_PUB, 1, ssleep)
    if stamps:
        l = lab("s"); e("s_cmp_eq_u32 s%d, 0" % sB); e("s_cbranch_scc1 %s" % l); stamp(4); e("%s:" % l)
    slp(h1delay)
    a = rW + 24
    x = a + 16
    c("combine the 16 splits for this workgroup's 32 dims")
    e("L_h1spin:")
    e("buffer_load_dwordx4 %s, v%d, s[%d:%d], s%d offen sc1" % (vr(x, 4), vAH1, sWSD, sWSD + 3, sST + 4))
    e("buffer_load_dwordx4 %s, v%d, s[%d:%d], s%d offen offset:16 sc1" % (vr(x + 4, 4), vAH1, sWSD, sWSD + 3, sST + 4))
    e("s_waitcnt vmcnt(1)")
    e("v_max_f32_dpp v14, v%d, v%d row_ror:8 row_mask:0xf bank_mask:0xf" % (x + 3, x + 3))
    e("v_max3_u32 v15, v%d, v%d, v%d" % (x, x + 1, x + 2))
    e("v_alignbit_b32 v%d, v%d, v%d, 8" % (a + 1, x, x + 1))
    e("v_max_f32_dpp v14, v14, v14 row_ror:4 row_mask:0xf bank_mask:0xf")
    e("v_alignbit_b32 v%d, v%d, v%d, 16" % (a + 2, x + 1, x + 2))
    e("v_lshlrev_b32 v%d, 8, v%d" % (a + 3, x + 2))
    e("v_max_f32_dpp v14, v14, v14 row_ror:2 row_mask:0xf bank_mask:0xf")
    e("s_waitcnt vmcnt(0)")
    e("v_max3_u32 v15, v15, v%d, v%d" % (x + 3, x + 4))
    e("v_max_f32_dpp v14, v14, v14 row_ror:1 row_mask:0xf bank_mask:0xf")
    e("v_max3_u32 v15, v15, v%d, v%d" % (x + 5, x + 6))
    e("v_sub_f32 v14, v%d, v14" % (x + 3))
    e("v_max_u32 v15, v15, v%d" % (x + 7))
    e("v_exp_f32 v14, v14")
    e("v_cmp_eq_u32 vcc, -1, v15")
    e("v_alignbit_b32 v%d, v%d, v%d, 8" % (a + 5, x + 4, x + 5))
    e("v_alignbit_b32 v%d, v%d, v%d, 16" % (a + 6, x + 5, x + 6))
    e("v_lshlrev_b32 v%d, 8, v%d" % (a + 7, x + 6))
    e("s_cbranch_vccz L_h1ok")
    bound(); slp(gsleep); e("s_branch L_h1spin")
    e("L_h1ok:")
    for i in range(8): e("v_mul_f32 v%d, v%d, v14" % (a + i, (x + i if i % 4 == 0 else a + i)))
    for r in (8, 4, 2, 1):
        e("v_add_f32_dpp v14, v14, v14 row_ror:%d row_mask:0xf bank_mask:0xf" % r)
        for i in range(8): e("v_add_f32_dpp v%d, v%d, v%d row_ror:%d row_mask:0xf bank_mask:0xf" % (a + i, a + i, a + i, r))
    e("v_rcp_f32 v14, v14"); e("s_nop 0")
    for i in range(8): e("v_mul_f32 v%d, v%d, v14" % (a + i, a + i))
    for p in range(4): e("v_cvt_pk_bf16_f32 v%d, v%d, v%d" % (a + 12 + p, a + 2 * p, a + 2 * p + 1))
    e("s_mov_b32 exec_lo, 0x00010001"); e("s_mov_b32 exec_hi, 0x00010001")
    e("ds_write_b128 v13, %s offset:%d" % (vr(a + 12, 4), O_OP))
    e("ds_write_b32 v3, v1 offset:%d" % O_OPR)
    e("s_mov_b64 exec, -1")
    e("s_add_u32 s%d, s%d, 1" % (sB, sB))
    if stamps:
        l = lab("s"); e("s_cmp_eq_u32 s%d, 2" % sB); e("s_cbranch_scc1 %s" % l); stamp(3); e("%s:" % l)
    e("s_cmp_lt_u32 s%d, 2" % sB); e("s_cbranch_scc1 L_svc_branch")
    stamp(5); stamp_flush()
    e("s_endpgm")

    nv = NV + (8 if stamps else 0)
    e('.section .rodata,"a"\n.p2align 6\n.amdhsa_kernel %s_kernel' % KN)
    e("  .amdhsa_next_free_vgpr %d\n  .amdhsa_next_free_sgpr 102\n  .amdhsa_accum_offset %d" % (nv, nv))
    e("  .amdhsa_group_segment_fixed_size 0\n  .amdhsa_kernarg_size 104\n  .amdhsa_user_sgpr_count 2\n  .amdhsa_user_sgpr_kernarg_segment_ptr 1\n  .amdhsa_system_sgpr_workgroup_id_x 1\n  .amdhsa_float_denorm_mode_32 3\n.end_amdhsa_kernel")
    L = [(x[:-3] + (ldpol if "load" in x else stpol)) if x.endswith(" sc1") and x.startswith("buffer_") else x for x in L]
    return "\n".join(("    " + x if x and not x.endswith(":") and not x.startswith((";", ".", " ")) else x) for x in L) + "\n"

if __name__ == "__main__":
    out = sys.argv[1]
    kw = {}
    for a in sys.argv[2:]:
        k, v = a.split("=")
        kw[k] = v.replace("+", " ") if k.endswith("pol") or k == "WL" else int(v)
    t = gen(**kw)
    open(out, "w").write(t)
    for p in hazard.check(t): print("HAZARD", p)
```

```python
import sys, os
sys.path.insert(0, os.path.dirname(os.path.abspath(__file__)))
import hazard
KN = "concat_heads__sliding_block_cached__gqa_block_cached__decode"
HEADER = open(os.path.join(os.path.dirname(os.path.abspath(__file__)), "header.txt")).read()

def gen(stamps=0, D=3, NTS=9, P0=0, barw=8, phaseA=384, phaseB=640, rot=1, nstatB=60, prio=1,
        csleep=1, gsleep=1, bdelay=40, adefer=130, woearly=0, pipe2=1, pd2=12, pol="nt", diagspin=0, clr0=1, ssleep=1, h1delay=16, wowait=0, nowo=0, wosplit=0, ldpol='sc1', stpol='sc1', aorder=0, one=1, WN=None, WK=None, WH=20, WL=None, jit=0, vsleep=1):
    if WL: WL = [int(x) for x in WL.split(':')]; assert len(WL) == 8; WN = WK = WL[0]; D = 3
    if WN is None: WN = (D - 1) * 8
    if WK is None: WK = WN
    if not WL: D = -(-max(WN, WK) // 8) + 1
    pubi = 0
    if WL:
        while WL[pubi] - pubi > 16: pubi += 1
    L = []
    def e(s=""):
        for x in s.split("\n"): L.append(x)
    def c(s): e("; " + s)
    NT_A, NT_B = 8, 64
    NT = NT_A + NT_B
    RING = NTS * 16384
    LB = RING
    O_LANDED, O_TOTAL, O_NEXT, O_CNTQ, O_CNTM, O_QRDY, O_OPR, O_PUB = 0, 4, 16, 32, 36, 44, 48, 56
    O_OP = 64
    O_QB = 192
    O_SCR = 1216
    O_SC = O_SCR + 6400
    LDS_BYTES = RING + O_SC + max(nstatB, NT_A) * 128
    NS = 2 * NTS
    JB = 2 * NT_A
    JD = JB + 2 * nstatB
    WS_QX, WS_NONCE, WS_CTR, WS_H1 = 0, 0x10000, 0x11000, 0x20000
    WS_H2 = WS_H1 + 512 * 1024
    WS_SIZE = WS_H2 + 512 * 1152
    TAGINC = 0x9e3779b9
    dyn = nstatB < NT_B
    NSTAT = NT_A + nstatB
    NDYN = 16 * (NT_B - nstatB)
    LOG2E, SCALE = 0x3fb8aa3b, 0x3db504f3
    NRED, REDA = 36, 64
    sW, sH, sS, sWO, sBOUND, sCST, sCCNT = 3, 30, 31, 32, 33, 34, 35
    sKD, sVD = 36, 40
    sEND, sWI, sRET2 = 36, 37, 38
    sPK0, sPK1, sPK2, sUP = 40, 41, 42, 43
    sOFF, sOFF2, sLIN, sBASE, sMASK, sSLOT, sTI, sFREE, sTMP, sTMP2 = 44, 45, 46, 47, 48, 49, 51, 52, 53, 54
    sST = 44
    sTAG = 55
    sWSD, sXD, sQD, sOD, sOUTD = 56, 60, 64, 68, 72
    sCTR, sTK, sPH = 60, 62, 64
    sM1, sM2, sM3, sMG, sAL, sRET = 76, 78, 80, 82, 84, 86
    sRJ, sH2 = 88, 89
    sMODE, sJ, sSTEP = 60, 61, 62
    sT, sSL, sNEED, sLAND, sB, sC = 90, 91, 92, 93, 94, 95
    sLOG2E, sSCALE, sPLO, sPHI = 96, 97, 98, 99
    vL = 0
    vQ, vK, vV, vO, vS, vP, vRA, vRB = 8, 24, 56, 88, 120, 128, 132, 164
    vAK0, vAV0, vAK, vAV = 196, 197, 198, 202
    vM, vMC, vLS, vPM = 210, 211, 212, 213
    vT = 217
    vLB, vX, vAWO, vAH2, vAMD, vAML, vANX, vL16 = 232, 233, 234, 235, 236, 237, 238, 239
    vASC0, vASC = 230, 231
    NV = 240
    def stamp(idx):
        if stamps:
            e("s_memrealtime s[100:101]"); e("s_waitcnt lgkmcnt(0)")
            e("v_writelane_b32 v%d, s100, %d" % (NV, 2 * idx)); e("v_writelane_b32 v%d, s101, %d" % (NV, 2 * idx + 1))
    def stamp_flush():
        if stamps:
            e("s_add_u32 s44, s28, 0x10000000"); e("s_addc_u32 s45, s29, 0")
            e("s_lshl_b32 s46, s2, 9"); e("s_lshl_b32 s47, s%d, 6" % sW); e("s_add_u32 s46, s46, s47")
            e("v_lshl_add_u32 v1, v%d, 2, s46" % vL)
            e("s_mov_b64 exec, 0xffff")
            e("global_store_dword v1, v%d, s[44:45]" % NV)
            e("s_mov_b64 exec, -1")
    uid = [0]
    def lab(n):
        uid[0] += 1; return "L_%s_%d" % (n, uid[0])
    nb = [0]
    def bound():
        if jit:
            nb[0] += 1
            e("s_mov_b32 s100, %d" % nb[0]); c("bound %d" % nb[0])
            e("s_sub_u32 s%d, s%d, 1" % (sBOUND, sBOUND)); e("s_cbranch_scc1 L_bail")
        else:
            e("s_sub_u32 s%d, s%d, 1" % (sBOUND, sBOUND)); e("s_cbranch_scc1 L_end")
    def srd(d, p, n):
        e("s_mov_b32 s%d, s%d" % (d, p)); e("s_mov_b32 s%d, s%d" % (d + 1, p + 1))
        e("s_mov_b32 s%d, %s" % (d + 2, n)); e("s_mov_b32 s%d, 0x20000" % (d + 3))
    def vr(b, n): return "v[%d:%d]" % (b, b + n - 1)
    def call(l, r=sRET): e("s_call_b64 s[%d:%d], %s" % (r, r + 1, l))
    def ret(r=sRET): e("s_setpc_b64 s[%d:%d]" % (r, r + 1))
    def slp(n):
        if n: e("s_sleep %d" % n)
    def lds_wait(addr_v, off, val, n_sleep, tmp=sST + 8, dst=1, cmp="ge_u32"):
        sp = lab("w"); ok = lab("ok")
        e("%s:" % sp)
        e("ds_read_b32 v%d, v%d offset:%d" % (dst, addr_v, off))
        e("s_waitcnt lgkmcnt(0)")
        e("v_readfirstlane_b32 s%d, v%d" % (tmp, dst))
        e("s_cmp_%s s%d, %d" % (cmp, tmp, val)); e("s_cbranch_scc1 %s" % ok)
        bound(); slp(n_sleep); e("s_branch %s" % sp)
        e("%s:" % ok)
    def ds1(ins):
        if one: e("s_mov_b64 exec, 1")
        e(ins)
        if one: e("s_mov_b64 exec, -1")
    def jitter(p=3, n=40):
        if jit:
            l = lab("j")
            e("s_mul_i32 s101, s101, 1664525"); e("s_add_u32 s101, s101, 1013904223")
            e("s_lshr_b32 s100, s101, %d" % (32 - p)); e("s_cbranch_scc1 %s" % l)
            e("s_sleep %d" % min(127, n * jit)); e("%s:" % l)
    def packsel():
        e("s_mov_b32 s%d, 0x07060503" % sPK0); e("s_mov_b32 s%d, 0x06050302" % sPK1); e("s_mov_b32 s%d, 0x05030201" % sPK2)
    def pack4(dst, src):
        e("v_perm_b32 v%d, v%d, v%d, s%d" % (dst, src, src + 1, sPK0))
        e("v_perm_b32 v%d, v%d, v%d, s%d" % (dst + 1, src + 1, src + 2, sPK1))
        e("v_perm_b32 v%d, v%d, v%d, s%d" % (dst + 2, src + 2, src + 3, sPK2))

    e(HEADER.rstrip())
    e("; @launch grid=(256,1,1) block=(320,1,1) lds=%d" % LDS_BYTES)
    e('.amdgcn_target "amdgcn-amd-amdhsa--gfx950"')
    e(".text\n.globl %s_kernel\n.p2align 8\n.type %s_kernel,@function\n%s_kernel:" % (KN, KN, KN))
    e("s_cmp_ge_u32 s2, 256")
    e("s_cbranch_scc1 L_end")
    e("s_load_dwordx16 s[4:19], s[0:1], 0")
    e("s_load_dwordx8 s[20:27], s[0:1], 64")
    e("s_load_dwordx2 s[28:29], s[0:1], 96")
    e("v_lshrrev_b32 v1, 6, v0")
    e("v_and_b32 v%d, 63, v0" % vL)
    e("v_readfirstlane_b32 s%d, v1" % sW)
    e("s_lshr_b32 s%d, s2, 4" % sH)
    e("s_and_b32 s%d, s2, 15" % sS)
    e("s_mov_b32 s%d, 0x200000" % sBOUND)
    if diagspin: e("s_memrealtime s[98:99]")
    e("v_mov_b32 v%d, %d" % (vLB, LB))
    if stamps:
        e("v_mov_b32 v%d, 0" % NV); e("v_mov_b32 v241, 0"); e("v_mov_b32 v242, 0"); e("s_waitcnt lgkmcnt(0)"); stamp(0)
    if jit:
        e("s_memrealtime s[100:101]"); e("s_waitcnt lgkmcnt(0)"); e("s_mul_i32 s101, s2, 77"); e("s_add_u32 s101, s101, s100"); e("s_mul_i32 s100, s%d, 99991" % sW); e("s_add_u32 s101, s101, s100")
        jitter(1, 60); jitter(2, 60)
    e("s_cmp_eq_u32 s%d, 1" % sW)
    e("s_cbranch_scc1 L_loader")
    e("s_cmp_eq_u32 s%d, 4" % sW)
    e("s_cbranch_scc1 L_service")

    c("==== consumers.  q-projection block of this workgroup: 64 columns (s&7) x 288 rows (s>>3), 96 rows per wave")
    e("s_sub_u32 s%d, s%d, 1" % (sC, sW)); e("s_cselect_b32 s%d, 0, s%d" % (sC, sC))
    rW, rX, rACC = 24, 72, 80
    e("v_lshrrev_b32 v1, 3, v%d" % vL)
    e("v_and_b32 v2, 7, v%d" % vL)
    e("v_mul_u32_u24 v3, 24, v1")
    e("v_mul_u32_u24 v4, %d, v1" % (12 * 8192))
    e("v_lshl_add_u32 v4, v2, 4, v4")
    e("s_lshr_b32 s%d, s%d, 3" % (sST, sS))
    e("s_mul_i32 s%d, s%d, 288" % (sST + 1, sST))
    e("s_mul_i32 s%d, s%d, 96" % (sST + 2, sC))
    e("s_add_u32 s%d, s%d, s%d" % (sST + 1, sST + 1, sST + 2))
    e("s_lshl_b32 s%d, s%d, 1" % (sST + 2, sST + 1))
    e("s_lshl_b32 s%d, s%d, 13" % (sST + 3, sST + 1))
    e("s_lshl_b32 s%d, s%d, 9" % (sST + 4, sH))
    e("s_and_b32 s%d, s%d, 3" % (sST + 5, sS))
    e("s_lshl_b32 s%d, s%d, 7" % (sST + 5, sST + 5))
    e("s_add_u32 s%d, s%d, s%d" % (sST + 3, sST + 3, sST + 4))
    e("s_add_u32 s%d, s%d, s%d" % (sST + 3, sST + 3, sST + 5))
    e("s_mov_b32 s%d, 1152" % (sXD + 2)); e("s_mov_b32 s%d, 0x20000" % (sXD + 3))
    e("s_mov_b32 s%d, 4718592" % (sQD + 2)); e("s_mov_b32 s%d, 0x20000" % (sQD + 3))
    e("s_bitcmp1_b32 s%d, 2" % sS)
    e("s_waitcnt lgkmcnt(0)")
    e("s_cselect_b32 s%d, s20, s10" % sQD); e("s_cselect_b32 s%d, s21, s11" % (sQD + 1))
    e("s_cselect_b32 s%d, s14, s4" % sXD); e("s_cselect_b32 s%d, s15, s5" % (sXD + 1))
    for i in range(12):
        e("buffer_load_dwordx4 %s, v4, s[%d:%d], s%d offen %s" % (vr(rW + 4 * i, 4), sQD, sQD + 3, sST + 3, pol))
        if i < 11: e("s_add_u32 s%d, s%d, 8192" % (sST + 3, sST + 3))
        if i == 1:
            for k in range(3):
                e("buffer_load_dwordx2 %s, v3, s[%d:%d], s%d offen offset:%d" % (vr(rX + 2 * k, 2), sXD, sXD + 3, sST + 2, 8 * k))
    e("s_load_dword s%d, s[28:29], %d" % (sTAG, WS_NONCE))
    srd(sWSD, 28, WS_SIZE)
    c("own projection record (branch 0): index = sc*128 + h*8 + (s&7)")
    e("s_lshl_b32 s%d, s%d, 7" % (sST + 6, sST))
    e("s_lshl_b32 s%d, s%d, 3" % (sST + 7, sH)); e("s_and_b32 s%d, s%d, 7" % (sST + 8, sS)); e("s_add_u32 s%d, s%d, s%d" % (sST + 7, sST + 7, sST + 8))
    e("s_add_u32 s%d, s%d, s%d" % (sST + 6, sST + 6, sST + 7))
    e("s_mul_i32 s%d, s%d, 1152" % (sH2, sST + 6)); e("s_add_u32 s%d, s%d, %d" % (sH2, sH2, WS_H2))
    e("s_mov_b32 s%d, 0xcccccccc" % sM1); e("s_mov_b32 s%d, 0xcccccccc" % (sM1 + 1))
    e("s_mov_b32 s%d, 0xf0f0f0f0" % sM2); e("s_mov_b32 s%d, 0xf0f0f0f0" % (sM2 + 1))
    e("s_mov_b32 s%d, 0xff00ff00" % sM3); e("s_mov_b32 s%d, 0xff00ff00" % (sM3 + 1))
    e("s_mov_b32 s%d, 0xffff0000" % sMG); e("s_mov_b32 s%d, 0xffff0000" % (sMG + 1))
    e("s_mov_b32 s%d, %#x" % (sLOG2E, LOG2E)); e("s_mov_b32 s%d, %#x" % (sSCALE, SCALE))
    e("s_mov_b32 s%d, 0x05040100" % sPLO); e("s_mov_b32 s%d, 0x07060302" % sPHI)
    packsel()
    e("v_and_b32 v5, 15, v%d" % vL)
    e("v_lshrrev_b32 v6, 4, v%d" % vL)
    c("K fragment address: row m, 16-byte chunk slab ^ ((m&7)<<1)")
    e("v_and_b32 v7, 7, v5"); e("v_lshlrev_b32 v7, 1, v7"); e("v_xor_b32 v7, v7, v6")
    e("v_lshlrev_b32 v7, 4, v7"); e("v_lshl_add_u32 v%d, v5, 8, v7" % vAK0)
    c("V transpose-read address: row = 4g + (n>>2); row*256 + (row&7)*32 + (n&3)*8")
    e("v_lshrrev_b32 v7, 2, v5"); e("v_lshl_add_u32 v7, v6, 2, v7")
    e("v_and_b32 v%d, 7, v7" % vT); e("v_lshlrev_b32 v%d, 5, v%d" % (vT, vT)); e("v_lshl_add_u32 v7, v7, 8, v%d" % vT)
    e("v_and_b32 v%d, 3, v5" % vT); e("v_lshl_add_u32 v%d, v%d, 3, v7" % (vAV0, vT))
    e("v_lshlrev_b32 v7, 1, v%d" % vL); e("v_add_u32 v%d, %d, v7" % (vASC0, LB + O_SC))
    c("P placement masks: lane column n = (j<<1 | head) keeps key slot j of its slab")
    e("v_mov_b32 v7, 0xffff"); e("v_mov_b32 v%d, 0xffff0000" % vT)
    e("v_cndmask_b32 v7, v7, v%d, s[%d:%d]" % (vT, sM1, sM1 + 1))
    e("v_lshrrev_b32 v%d, 2, v5" % vT)
    for p in range(4):
        e("v_cmp_eq_u32 vcc, %d, v%d" % (p, vT)); e("s_nop 1"); e("v_cndmask_b32 v%d, 0, v7, vcc" % (vPM + p))
    c("wo block of this workgroup: 32 rows x 288 columns; 16-byte column chunks per wave 16/16/4 or 4/16/16")
    e("s_lshl_b32 s%d, s%d, 4" % (sCST, sC))
    e("s_cmp_eq_u32 s%d, 2" % sC); e("s_cselect_b32 s%d, 4, 16" % sCCNT)
    e("s_cmp_eq_u32 s%d, 0" % sST); e("s_cbranch_scc1 L_sc0")
    e("s_sub_u32 s%d, s%d, 12" % (sCST, sCST))
    e("s_cmp_eq_u32 s%d, 0" % sC); e("s_cselect_b32 s%d, 4, 16" % sCCNT); e("s_cselect_b32 s%d, 0, s%d" % (sCST, sCST))
    e("L_sc0:")
    e("s_sub_u32 s%d, s%d, 1" % (sST + 8, sCCNT))
    e("v_min_u32 v7, s%d, v5" % (sST + 8))
    e("v_mul_u32_u24 v%d, %d, v6" % (vT, 2 * 1152))
    e("v_lshl_add_u32 v%d, v7, 4, v%d" % (vAWO, vT))
    e("v_lshlrev_b32 v7, 5, v5"); e("v_lshl_add_u32 v%d, v6, 4, v7" % vAH2)
    c("k = 8*slab + i of row block (head, xb) is dim (i&3)*32 + xb*8 + 2*slab + (i>>2)")
    e("s_lshl_b32 s%d, s%d, 8" % (sST + 8, sH)); e("s_bfe_u32 s%d, s%d, 0x10002" % (sST + 9, sS)); e("s_lshl_b32 s%d, s%d, 7" % (sST + 9, sST + 9))
    e("s_add_u32 s%d, s%d, s%d" % (sST + 8, sST + 8, sST + 9)); e("s_and_b32 s%d, s%d, 3" % (sST + 9, sS)); e("s_lshl_b32 s%d, s%d, 3" % (sST + 9, sST + 9))
    e("s_add_u32 s%d, s%d, s%d" % (sST + 8, sST + 8, sST + 9)); e("s_mul_i32 s%d, s%d, 1152" % (sST + 8, sST + 8))
    e("s_mul_i32 s%d, s%d, 576" % (sST + 9, sST)); e("s_add_u32 s%d, s%d, s%d" % (sST + 8, sST + 8, sST + 9))
    e("s_lshl_b32 s%d, s%d, 4" % (sST + 9, sCST)); e("s_add_u32 s%d, s%d, s%d" % (sWO, sST + 8, sST + 9))
    c("partial-result exchange addresses")
    e("v_lshlrev_b32 v%d, 4, v%d" % (vL16, vL)); e("v_add_u32 v%d, %d, v%d" % (vAMD, LB + O_SCR, vL16))
    e("v_lshrrev_b32 v7, 5, v%d" % vL); e("v_lshlrev_b32 v7, 3, v7"); e("v_add_u32 v%d, %d, v7" % (vAML, LB + O_SCR + 1024))
    e("s_lshl_b32 s%d, s%d, 2" % (sST + 8, sC)); e("v_add_u32 v%d, s%d, v%d" % (vANX, sST + 8, vLB))
    c("Q fragment address: head (n&1)*256 + slab*16")
    e("v_and_b32 v7, 1, v%d" % vL); e("v_lshlrev_b32 v7, 8, v7")
    e("v_lshl_add_u32 v7, v6, 4, v7"); e("v_add_u32 v%d, v7, v%d" % (vX, vLB))
    for k in range(8): e("v_mov_b32 v%d, 0" % (rACC + k))
    if barw < 13: e("s_waitcnt vmcnt(%d)" % barw)
    e("s_barrier")
    for pr in range(6):
        e("s_waitcnt vmcnt(%d)" % (10 - 2 * pr))
        for d in range(4):
            lo, hi = rW + 8 * pr + d, rW + 8 * pr + 4 + d
            e("v_perm_b32 v%d, v%d, v%d, s%d" % (vT + 2 * d, hi, lo, sPLO))
            e("v_perm_b32 v%d, v%d, v%d, s%d" % (vT + 2 * d + 1, hi, lo, sPHI))
        for k in range(8):
            e("v_dot2_f32_bf16 v%d, v%d, v%d, v%d" % (rACC + k, vT + k, rX + pr, rACC + k))
    e("s_lshl_b32 s%d, s%d, 11" % (sST + 8, sC)); e("s_add_u32 s%d, s%d, %d" % (sST + 8, sST + 8, LB + O_SCR))
    e("v_lshl_add_u32 v7, v%d, 5, s%d" % (vL, sST + 8))
    e("v_mov_b32 v2, 1")
    e("ds_write_b128 v7, %s" % vr(rACC, 4)); e("ds_write_b128 v7, %s offset:16" % vr(rACC + 4, 4))
    e("s_mov_b64 exec, 1"); e("ds_add_u32 v%d, v2 offset:%d" % (vLB, O_CNTQ)); e("s_mov_b64 exec, -1")
    stamp(1)
    def woload(raw, p):
        srd(sOD, p, 4718592)
        for i in range(8):
            if i < 4: so = sWO if i == 0 else sST + 5 + i
            else: so = sWO if i == 4 else sST + 1 + i
            e("buffer_load_dwordx4 %s, v%d, s[%d:%d], s%d offen offset:%d %s" % (vr(raw + 4 * i, 4), vAWO, sOD, sOD + 3, so, (i >> 2) * 1152, pol))
    lds_wait(vLB, O_QRDY, 1, csleep)
    e("s_add_u32 s%d, s%d, %#x" % (sTAG, sTAG, TAGINC))
    stamp(2)
    e("s_mov_b32 s%d, 0" % sLAND)
    e("s_mov_b32 s%d, 0" % sB); e("s_mov_b32 s%d, 0" % sWI)
    def run(mode, j0, end):
        e("s_mov_b32 s%d, %d" % (sMODE, mode)); e("s_mov_b32 s%d, s%d" % (sT, sC)); e("s_add_u32 s%d, s%d, %d" % (sJ, sC, j0))
        e("s_add_u32 s%d, s%d, %d" % (sSL, sC, j0 % NS)); e("s_cmp_ge_u32 s%d, %d" % (sSL, NS)); e("s_cselect_b32 s%d, %d, 0" % (sST + 8, NS))
        e("s_sub_u32 s%d, s%d, s%d" % (sSL, sSL, sST + 8)); e("s_lshl_b32 s%d, s%d, 13" % (sSL, sSL))
        e("s_mov_b32 s%d, %d" % (sEND, end)); call("L_tiles")
    e("s_mov_b32 s%d, 3" % sSTEP)
    call("L_begin")
    run(1, 0, NT_A); run(2, NT_A, NT_A)
    call("L_dump")
    stamp(3)
    e("s_mov_b32 s%d, 1" % sB)
    lds_wait(vLB, O_QRDY, 2, csleep)
    call("L_begin")
    run(1, JB, nstatB); run(2, JB + nstatB, nstatB)
    if dyn:
        c("shared tiles come as (K, V) pairs; the tile numbering continues")
        e("s_mov_b32 s%d, 0" % sMODE); e("s_mov_b32 s%d, 6" % sSTEP)
        e("s_sub_u32 s%d, s%d, %d" % (sJ, sT, nstatB)); e("s_lshl_b32 s%d, s%d, 1" % (sJ, sJ))
        e("s_add_u32 s%d, s%d, %d" % (sSL, sJ, JD % NS)); e("s_add_u32 s%d, s%d, %d" % (sJ, sJ, JD))
        e("s_cmp_ge_u32 s%d, %d" % (sSL, NS)); e("s_cselect_b32 s%d, %d, 0" % (sST + 8, NS))
        e("s_sub_u32 s%d, s%d, s%d" % (sSL, sSL, sST + 8)); e("s_lshl_b32 s%d, s%d, 13" % (sSL, sSL))
        e("s_mov_b32 s%d, 0x7fffffff" % sEND); call("L_tiles")
    stamp(4); call("L_dump"); stamp(5)
    if woearly:
        e("s_cmp_lg_u32 s%d, 0" % sWI); e("s_cbranch_scc1 L_wodone")
    if wosplit:
        for i in range(1, 4): e("s_add_u32 s%d, s%d, %d" % (sST + 5 + i, sWO, i * 32 * 1152))
        woload(vRB if wosplit == 2 else vRA, 22 if wosplit == 2 else 12)
    if wowait == 1: lds_wait(vLB, O_PUB + 4, 1, 0)
    if wowait > 1: slp(wowait)
    if wosplit:
        for i in range(1, 4): e("s_add_u32 s%d, s%d, %d" % (sST + 5 + i, sWO, i * 32 * 1152))
        woload(vRA if wosplit == 2 else vRB, 12 if wosplit == 2 else 22)
    elif not nowo: call("L_woload", sRET2)
    e("L_wodone:")
    def woperm(raw, dst):
        for ee in range(8):
            for p in range(4):
                e("v_perm_b32 v%d, v%d, v%d, s%d" % (dst + 4 * ee + p, raw + 4 * (2 * p + 1) + ee // 2, raw + 4 * (2 * p) + ee // 2, sPHI if ee & 1 else sPLO))
    def proj(W, op, y, b):
        e("s_add_u32 s%d, s%d, %d" % (sST + 6, sH2, b * 256 * 1152))
        e("s_lshl_b32 s%d, s%d, 5" % (sST + 9, sCST)); e("s_add_u32 s%d, s%d, s%d" % (sST + 6, sST + 6, sST + 9))
        sp = lab("ps"); ok = lab("pok")
        e("%s:" % sp)
        e("ds_read_b32 v1, v%d offset:%d" % (vLB, O_OPR + 4 * b))
        e("ds_read_b128 %s, v4 offset:%d" % (vr(op, 4), O_OP + 64 * b))
        e("s_waitcnt lgkmcnt(1)")
        e("v_readfirstlane_b32 s%d, v1" % (sST + 8))
        e("s_cmp_lg_u32 s%d, 0" % (sST + 8)); e("s_cbranch_scc1 %s" % ok)
        bound(); e("s_branch %s" % sp)
        e("%s:" % ok)
        e("s_waitcnt lgkmcnt(0)")
        for ee in (0, 4, 1, 5, 2, 6, 3, 7):
            e("v_mfma_f32_16x16x32_bf16 %s, %s, %s, 0" % (vr(vV + 4 * ee, 4), vr(op, 4), vr(W + 4 * ee, 4)))
        e("s_nop 1")
        for r in range(4):
            e("v_cndmask_b32 v%d, v%d, v%d, s[%d:%d]" % (y + r, vV + 4 * r, vV + 16 + 4 * r, sMG, sMG + 1))
            if r < 3: e("s_nop 0")
        pack4(y + 4, y)
        e("s_mov_b32 exec_lo, s%d" % (sST + 7)); e("s_mov_b32 exec_hi, 0")
        e("buffer_store_dwordx4 %s, v%d, s[%d:%d], s%d offen sc1" % (vr(y + 4, 4), vAH2, sWSD, sWSD + 3, sST + 6))
        e("s_mov_b64 exec, -1")
    if aorder:
        e("v_and_b32 v4, 48, v%d" % vL); e("v_add_u32 v4, v4, v%d" % vLB)
        e("s_bfm_b32 s%d, s%d, 0" % (sST + 7, sCCNT)); e("s_mul_i32 s%d, s%d, 0x10001" % (sST + 7, sST + 7))
        e("v_mov_b32 v%d, s%d" % (vQ + 7, sTAG)); e("v_mov_b32 v%d, s%d" % (vQ + 15, sTAG))
        e("s_waitcnt vmcnt(8)")
        woperm(vRA, vO)
        e("s_waitcnt vmcnt(0)")
        woperm(vRB, vK)
        proj(vO, vS, vQ, 1)
        proj(vK, vS + 4, vQ + 8, 0)
    else:
        e("s_waitcnt vmcnt(%d)" % (0 if wosplit == 2 else 8))
        woperm(vRA, vO)
        e("s_mov_b32 s%d, 0" % sB)
        call("L_proj")
        e("s_waitcnt vmcnt(1)")
        woperm(vRB, vO)
        e("s_mov_b32 s%d, 1" % sB)
        call("L_proj")
    stamp(6); stamp_flush()
    e("s_endpgm")

    c("---- start a branch: Q fragments, empty running state")
    e("L_begin:")
    e("s_lshl_b32 s%d, s%d, 9" % (sST + 8, sB))
    e("v_add_u32 v1, s%d, v%d" % (sST + 8, vX))
    for k in range(4): e("ds_read_b128 %s, v1 offset:%d" % (vr(vQ + 4 * k, 4), O_QB + k * 64))
    e("v_mov_b32 v%d, 0xff61b1e6" % vM)
    e("v_mov_b32 v%d, 0" % vMC); e("v_mov_b32 v%d, 0" % vLS)
    for i in range(32): e("v_mov_b32 v%d, 0" % (vO + i))
    e("s_waitcnt lgkmcnt(0)")
    ret()

    c("---- tile loop: ring tiles t, t+3, ... while t < end and t < total")
    e("L_tiles:")
    e("s_cmp_ge_u32 s%d, s%d" % (sT, sEND)); e("s_cbranch_scc1 L_tiles_ret")
    e("L_tile:")
    jitter(3, 40)
    e("s_add_u32 s%d, s%d, 1" % (sNEED, sJ))
    e("s_cmp_eq_u32 s%d, 0" % sMODE); e("s_cselect_b32 s%d, 0x2000, 0" % (sST + 8)); e("s_add_u32 s%d, s%d, s%d" % (sST + 8, sST + 8, sSL))
    e("v_add_u32 v%d, s%d, v%d" % (vAV, sST + 8, vAV0))
    e("v_add_u32 v%d, s%d, v%d" % (vAK, sSL, vAK0))
    e("s_lshl_b32 s%d, s%d, 7" % (sST + 8, sT)); e("v_add_u32 v%d, s%d, v%d" % (vASC, sST + 8, vASC0))
    e("s_add_u32 s%d, s%d, s%d" % (sJ, sJ, sSTEP))
    e("s_lshl_b32 s%d, s%d, 13" % (sST + 8, sSTEP)); e("s_add_u32 s%d, s%d, s%d" % (sSL, sSL, sST + 8))
    e("s_cmp_ge_u32 s%d, %d" % (sSL, RING)); e("s_cselect_b32 s%d, %d, 0" % (sST + 8, RING)); e("s_sub_u32 s%d, s%d, s%d" % (sSL, sSL, sST + 8))
    e("s_cmp_eq_u32 s%d, 2" % sMODE); e("s_cbranch_scc1 L_vonly")
    for k in range(1, 4): e("v_xor_b32 v%d, %d, v%d" % (vAK + k, k << 6, vAK))
    for cg in range(1, 8): e("v_xor_b32 v%d, %d, v%d" % (vAV + cg, cg << 5, vAV))
    e("s_cmp_ge_u32 s%d, s%d" % (sLAND, sNEED)); e("s_cbranch_scc1 L_kok")
    e("L_kspin:")
    e("ds_read_b64 v[2:3], v%d offset:%d" % (vLB, O_LANDED))
    e("s_waitcnt lgkmcnt(0)")
    e("v_readfirstlane_b32 s%d, v2" % sLAND)
    e("v_readfirstlane_b32 s%d, v3" % (sST + 9))
    e("s_cmp_ge_u32 s%d, s%d" % (sLAND, sNEED))
    e("s_cselect_b32 s%d, 1, 0" % (sST + 8))
    e("s_min_u32 s%d, s%d, s%d" % (sEND, sEND, sST + 9))
    e("s_cmp_lg_u32 s%d, 0" % (sST + 8)); e("s_cbranch_scc1 L_kok")
    e("s_cmp_ge_u32 s%d, s%d" % (sT, sEND)); e("s_cbranch_scc1 L_tiles_ret")
    if woearly:
        e("s_and_b32 s%d, s%d, 0x80000000" % (sST + 9, sST + 9)); e("s_or_b32 s%d, s%d, s%d" % (sST + 9, sST + 9, sWI))
        e("s_cbranch_scc1 L_knowo")
        call("L_woload", sRET2)
        e("L_knowo:")
    bound(); slp(csleep); e("s_branch L_kspin")
    e("L_kok:")
    def vreads():
        for cg in range(8):
            for blk in range(2):
                e("ds_read_b64_tr_b16 %s, v%d offset:%d" % (vr(vV + 4 * cg + 2 * blk, 2), vAV + cg, blk * 4096))
    for k in range(4):
        for blk in range(2):
            e("ds_read_b128 %s, v%d offset:%d" % (vr(vK + 16 * blk + 4 * k, 4), vAK + k, blk * 4096))
    e("ds_read_b32 v2, v%d offset:%d" % (vLB, O_LANDED))
    e("s_cmp_eq_u32 s%d, 0" % sMODE); e("s_cselect_b32 s%d, 1, 0" % (sST + 8)); e("s_add_u32 s%d, s%d, s%d" % (sNEED, sNEED, sST + 8))
    e("s_add_u32 s%d, s%d, 3" % (sT, sT))
    e("v_mov_b32 v4, s%d" % sNEED)
    for k in range(4):
        e("s_waitcnt lgkmcnt(%d)" % (7 - 2 * k))
        for blk in range(2):
            e("v_mfma_f32_16x16x32_bf16 %s, %s, %s, %s" % (vr(vS + 4 * blk, 4), vr(vK + 16 * blk + 4 * k, 4), vr(vQ + 4 * k, 4), "0" if k == 0 else vr(vS + 4 * blk, 4)))
    e("s_waitcnt lgkmcnt(0)")
    e("v_readfirstlane_b32 s%d, v2" % sLAND)
    e("s_nop 0")
    e("s_cmp_ge_u32 s%d, s%d" % (sLAND, sNEED)); e("s_cselect_b32 s%d, s%d, 1" % (sST + 8, sMODE))
    e("s_cmp_eq_u32 s%d, 0" % (sST + 8)); e("s_cbranch_scc0 L_soft")
    vreads()
    e("L_soft:")
    t = vT
    c("one score per lane: 32 keys x 2 heads")
    e("v_cndmask_b32 v%d, v%d, v%d, s[%d:%d]" % (t, vS, vS + 1, sM1, sM1 + 1))
    e("v_cndmask_b32 v%d, v%d, v%d, s[%d:%d]" % (t + 1, vS + 2, vS + 3, sM1, sM1 + 1))
    e("v_cndmask_b32 v%d, v%d, v%d, s[%d:%d]" % (t + 2, vS + 4, vS + 5, sM1, sM1 + 1))
    e("v_cndmask_b32 v%d, v%d, v%d, s[%d:%d]" % (t + 3, vS + 6, vS + 7, sM1, sM1 + 1))
    e("v_cndmask_b32 v%d, v%d, v%d, s[%d:%d]" % (t, t, t + 1, sM2, sM2 + 1))
    e("v_cndmask_b32 v%d, v%d, v%d, s[%d:%d]" % (t + 2, t + 2, t + 3, sM2, sM2 + 1))
    e("v_cndmask_b32 v%d, v%d, v%d, s[%d:%d]" % (t, t, t + 2, sM3, sM3 + 1))
    c("bf16(bf16(q.k) * Dh^-0.5), as the reference rounds them")
    e("v_cvt_pk_bf16_f32 v%d, v%d, v%d" % (t, t, t))
    e("v_and_b32 v%d, 0xffff0000, v%d" % (t, t))
    e("v_mul_f32 v%d, s%d, v%d" % (t, sSCALE, t))
    e("v_cvt_pk_bf16_f32 v%d, v%d, v%d" % (t, t, t))
    e("v_and_b32 v%d, 0xffff0000, v%d" % (t, t))
    e("v_cmp_gt_f32 vcc, v%d, v%d" % (t, vM))
    e("s_cbranch_vccnz L_newmax")
    e("L_maxok:")
    e("s_cmp_eq_u32 s%d, 1" % sMODE); e("s_cbranch_scc1 L_konly")
    e("L_prob:")
    e("v_fma_f32 v%d, v%d, s%d, v%d" % (t, t, sLOG2E, vMC))
    e("v_exp_f32 v%d, v%d" % (t, t))
    e("s_cmp_eq_u32 s%d, 0" % (sST + 8))
    e("v_add_f32 v%d, v%d, v%d" % (vLS, vLS, t))
    e("v_cvt_pk_bf16_f32 v%d, v%d, v%d" % (t, t, t))
    for p in range(4): e("v_and_b32 v%d, v%d, v%d" % (vP + p, t, vPM + p))
    e("s_cbranch_scc1 L_pv")
    e("s_cmp_ge_u32 s%d, s%d" % (sLAND, sNEED)); e("s_cbranch_scc1 L_vok")
    e("L_vspin:")
    e("ds_read_b32 v2, v%d offset:%d" % (vLB, O_LANDED))
    e("s_waitcnt lgkmcnt(0)")
    e("v_readfirstlane_b32 s%d, v2" % sLAND)
    e("s_cmp_ge_u32 s%d, s%d" % (sLAND, sNEED)); e("s_cbranch_scc1 L_vok")
    bound(); slp(vsleep); e("s_branch L_vspin")
    e("L_vok:")
    vreads()
    e("L_pv:")
    for cg in range(8):
        e("s_waitcnt lgkmcnt(%d)" % (14 - 2 * cg))
        e("v_mfma_f32_16x16x32_bf16 %s, %s, %s, %s" % (vr(vO + 4 * cg, 4), vr(vP, 4), vr(vV + 4 * cg, 4), vr(vO + 4 * cg, 4)))
    ds1("ds_write_b32 v%d, v4 offset:%d" % (vANX, O_NEXT))
    e("s_cmp_lt_u32 s%d, s%d" % (sT, sEND)); e("s_cbranch_scc1 L_tile")
    e("L_tiles_ret:")
    ret()
    c("K pass: keep the rounded scores for the V pass")
    e("L_konly:")
    e("ds_write_b16_d16_hi v%d, v%d" % (vASC, t))
    ds1("ds_write_b32 v%d, v4 offset:%d" % (vANX, O_NEXT))
    e("s_cmp_lt_u32 s%d, s%d" % (sT, sEND)); e("s_cbranch_scc1 L_tile")
    ret()
    e("L_vonly:")
    e("ds_read_u16 v%d, v%d" % (t, vASC))
    for cg in range(1, 8): e("v_xor_b32 v%d, %d, v%d" % (vAV + cg, cg << 5, vAV))
    e("s_add_u32 s%d, s%d, 3" % (sT, sT))
    e("v_mov_b32 v4, s%d" % sNEED)
    e("s_mov_b32 s%d, 1" % (sST + 8))
    e("s_waitcnt lgkmcnt(0)")
    e("v_lshlrev_b32 v%d, 16, v%d" % (t, t))
    e("s_branch L_prob")
    c("the running max rose: online-softmax rescale of l and O")
    e("L_newmax:")
    e("v_max_f32 v%d, v%d, v%d" % (t + 1, t, vM))
    for r in (2, 4, 8):
        e("s_nop 1"); e("v_max_f32_dpp v%d, v%d, v%d row_ror:%d row_mask:0xf bank_mask:0xf" % (t + 1, t + 1, t + 1, r))
    for sw in ("16", "32"):
        e("v_mov_b32 v%d, v%d" % (t + 2, t + 1)); e("s_nop 1")
        e("v_permlane%s_swap_b32 v%d, v%d" % (sw, t + 1, t + 2)); e("v_max_f32 v%d, v%d, v%d" % (t + 1, t + 1, t + 2))
    e("v_sub_f32 v%d, v%d, v%d" % (t + 2, vM, t + 1))
    e("v_mul_f32 v%d, s%d, v%d" % (t + 2, sLOG2E, t + 2))
    e("v_exp_f32 v%d, v%d" % (t + 2, t + 2))
    e("v_mov_b32 v%d, v%d" % (vM, t + 1))
    e("v_mul_f32 v%d, s%d, v%d" % (vMC, sLOG2E, t + 1))
    e("v_readlane_b32 s%d, v%d, 0" % (sAL, t + 2)); e("v_readlane_b32 s%d, v%d, 1" % (sAL + 1, t + 2))
    e("v_sub_f32 v%d, 0, v%d" % (vMC, vMC))
    e("v_mul_f32 v%d, v%d, v%d" % (vLS, vLS, t + 2))
    for i in range(16): e("v_pk_mul_f32 %s, %s, s[%d:%d]" % (vr(vO + 2 * i, 2), vr(vO + 2 * i, 2), sAL, sAL + 1))
    e("s_branch L_maxok")

    c("---- end of a branch: the wave with the last tile merges the three partials and publishes them")
    e("L_dump:")
    jitter(1, 30)
    a = vK
    vD = vV
    e("s_mul_i32 s%d, s%d, %d" % (sST + 8, sB, 3 * 1056))
    e("s_lshl_b32 s%d, s%d, 2" % (sST + 9, sB)); e("v_add_u32 v3, s%d, v%d" % (sST + 9, vLB))
    e("s_sub_u32 s%d, s%d, 2" % (sST + 7, sT))
    e("s_cmp_eq_u32 s%d, s%d" % (sST + 7, sEND)); e("s_cbranch_scc1 L_dm")
    e("s_mul_i32 s%d, s%d, 1056" % (sST + 9, sC)); e("s_add_u32 s%d, s%d, s%d" % (sST + 8, sST + 8, sST + 9))
    e("v_add_u32 v4, s%d, v%d" % (sST + 8, vAMD)); e("v_add_u32 v5, s%d, v%d" % (sST + 8, vAML))
    e("s_branch L_dr")
    e("L_dm:")
    e("s_cmp_eq_u32 s%d, 0" % sC); e("s_cselect_b32 s%d, 1056, 0" % (sST + 9)); e("s_add_u32 s%d, s%d, s%d" % (sST + 9, sST + 9, sST + 8))
    e("v_add_u32 v4, s%d, v%d" % (sST + 9, vAMD)); e("v_add_u32 v5, s%d, v%d" % (sST + 9, vAML))
    e("s_cmp_eq_u32 s%d, 2" % sC); e("s_cselect_b32 s%d, 1, 2" % (sST + 9)); e("s_mul_i32 s%d, s%d, 1056" % (sST + 9, sST + 9)); e("s_add_u32 s%d, s%d, s%d" % (sST + 9, sST + 9, sST + 8))
    e("v_add_u32 v%d, s%d, v%d" % (a + 16, sST + 9, vAMD)); e("v_add_u32 v%d, s%d, v%d" % (a + 17, sST + 9, vAML))
    def mreads():
        e("ds_read_b32 v%d, v3 offset:%d" % (a + 14, O_CNTM))
        e("ds_read_b64 %s, v5" % vr(a + 8, 2)); e("ds_read_b64 %s, v%d" % (vr(a + 10, 2), a + 17))
        e("ds_read_b128 %s, v4" % vr(a, 4)); e("ds_read_b128 %s, v%d" % (vr(a + 4, 4), a + 16))
    mreads()
    e("L_dr:")
    e("v_add_f32_dpp v7, v%d, v%d row_ror:2 row_mask:0xf bank_mask:0xf" % (vLS, vLS))
    e("v_mov_b32_dpp v%d, v%d quad_perm:[0,0,0,0] row_mask:0x3 bank_mask:0xf" % (a + 12, vM))
    e("v_mov_b32 v2, 1")
    e("v_add_f32_dpp v7, v7, v7 row_ror:4 row_mask:0xf bank_mask:0xf")
    e("v_mov_b32_dpp v%d, v%d quad_perm:[1,1,1,1] row_mask:0xc bank_mask:0xf" % (a + 12, vM))
    pk = ["v_pk_add_f32 %s, %s, %s" % (vr(vO + 4 * cg, 2), vr(vO + 4 * cg, 2), vr(vO + 4 * cg + 2, 2)) for cg in range(8)]
    e(pk[0]); e("v_add_f32_dpp v7, v7, v7 row_ror:8 row_mask:0xf bank_mask:0xf")
    e(pk[1]); e("v_mov_b32 v1, v7"); e(pk[2]); e(pk[3])
    e("v_permlane16_swap_b32 v7, v1"); e(pk[4]); e("v_add_f32 v7, v7, v1"); e(pk[5]); e("v_mov_b32 v1, v7"); e(pk[6]); e(pk[7])
    e("v_permlane32_swap_b32 v7, v1")
    for cg in range(8):
        e("v_permlane32_swap_b32 v%d, v%d" % (vO + 4 * cg, vO + 4 * cg + 1))
        if cg == 0: e("v_add_f32 v7, v7, v1")
        if cg == 3: e("v_mov_b32_dpp v%d, v7 quad_perm:[0,0,0,0] row_mask:0x3 bank_mask:0xf" % (a + 13))
        if cg == 6: e("v_mov_b32_dpp v%d, v7 quad_perm:[1,1,1,1] row_mask:0xc bank_mask:0xf" % (a + 13))
    for cg in range(8): e("v_add_f32 v%d, v%d, v%d" % (vO + 4 * cg, vO + 4 * cg, vO + 4 * cg + 1))
    for c2 in range(4): e("v_permlane16_swap_b32 v%d, v%d" % (vO + 8 * c2, vO + 8 * c2 + 4))
    for c2 in range(4): e("v_add_f32 v%d, v%d, v%d" % (vD + c2, vO + 8 * c2, vO + 8 * c2 + 4))
    c("lane = (head, x): O[dim = r*32 + x] in four registers")
    e("s_cmp_eq_u32 s%d, s%d" % (sST + 7, sEND)); e("s_cbranch_scc1 L_merge")
    e("ds_write_b64 v5, %s" % vr(a + 12, 2))
    e("ds_write_b128 v4, %s" % vr(vD, 4))
    e("s_mov_b64 exec, 1"); e("ds_add_u32 v3, v2 offset:%d" % O_CNTM); e("s_mov_b64 exec, -1")
    ret()
    e("L_mretry:")
    bound()
    mreads()
    e("L_merge:")
    e("s_lshl_b32 s%d, s%d, 8" % (sST + 9, sB)); e("s_add_u32 s%d, s%d, s2" % (sST + 9, sST + 9))
    e("s_lshl_b32 s%d, s%d, 10" % (sST + 9, sST + 9)); e("s_add_u32 s%d, s%d, %d" % (sST + 9, sST + 9, WS_H1))
    e("s_waitcnt lgkmcnt(2)")
    e("v_readfirstlane_b32 s%d, v%d" % (sST + 8, a + 14))
    e("v_max3_f32 v6, v%d, v%d, v%d" % (a + 8, a + 10, a + 12))
    e("s_cmp_lt_u32 s%d, 2" % (sST + 8)); e("s_cbranch_scc1 L_mretry")
    for r in (8, 10, 12): e("v_sub_f32 v%d, v%d, v6" % (a + r, a + r))
    for r in (8, 10, 12): e("v_mul_f32 v%d, s%d, v%d" % (a + r, sLOG2E, a + r))
    for r in (12, 8, 10): e("v_exp_f32 v%d, v%d" % (a + r, a + r))
    e("v_mul_f32 v7, v%d, v%d" % (a + 12, a + 13))
    for d in range(4): e("v_mul_f32 v%d, v%d, v%d" % (vD + d, vD + d, a + 12))
    e("v_fmac_f32 v7, v%d, v%d" % (a + 8, a + 9)); e("v_fmac_f32 v7, v%d, v%d" % (a + 10, a + 11))
    e("s_waitcnt lgkmcnt(0)")
    e("v_rcp_f32 v1, v7"); e("v_log_f32 v%d, v7" % (vD + 7))
    for d in range(4): e("v_fmac_f32 v%d, v%d, v%d" % (vD + d, a + d, a + 8))
    e("v_fmac_f32 v%d, s%d, v6" % (vD + 7, sLOG2E))
    for d in range(4): e("v_fmac_f32 v%d, v%d, v%d" % (vD + d, a + 4 + d, a + 10))
    for d in range(4): e("v_mul_f32 v%d, v%d, v1" % (vD + d, vD + d))
    c("16-byte piece = four values of o/l (top 24 bits each) + log2-sum-exp")
    pack4(vD + 4, vD)
    e("buffer_store_dwordx4 %s, v%d, s[%d:%d], s%d offen sc1" % (vr(vD + 4, 4), vL16, sWSD, sWSD + 3, sST + 9))
    e("ds_write_b32 v3, v2 offset:%d" % O_PUB)
    ret()

    c("---- wo blocks of both branches (raw rows)")
    e("L_woload:")
    e("s_mov_b32 s%d, 1" % sWI)
    for i in range(1, 4): e("s_add_u32 s%d, s%d, %d" % (sST + 5 + i, sWO, i * 32 * 1152))
    if aorder: woload(vRA, 22); woload(vRB, 12)
    else: woload(vRA, 12); woload(vRB, 22)
    ret(sRET2)

    c("---- project the combined 32 dims onto this wave's columns and publish the partial row")
    e("L_proj:")
    jitter(1, 30)
    e("s_lshl_b32 s%d, s%d, 2" % (sST + 9, sB)); e("v_add_u32 v3, s%d, v%d" % (sST + 9, vLB))
    e("s_lshl_b32 s%d, s%d, 6" % (sST + 9, sB)); e("v_and_b32 v4, 48, v%d" % vL); e("v_add3_u32 v4, v4, s%d, v%d" % (sST + 9, vLB))
    e("s_mul_i32 s%d, s%d, %d" % (sST + 6, sB, 256 * 1152)); e("s_add_u32 s%d, s%d, s%d" % (sST + 6, sST + 6, sH2))
    e("s_lshl_b32 s%d, s%d, 5" % (sST + 9, sCST)); e("s_add_u32 s%d, s%d, s%d" % (sST + 6, sST + 6, sST + 9))
    e("s_bfm_b32 s%d, s%d, 0" % (sST + 7, sCCNT)); e("s_mul_i32 s%d, s%d, 0x10001" % (sST + 7, sST + 7))
    e("v_mov_b32 v%d, s%d" % (vK + 11, sTAG))
    e("L_pspin:")
    e("ds_read_b32 v1, v3 offset:%d" % O_OPR)
    e("ds_read_b128 %s, v4 offset:%d" % (vr(vK, 4), O_OP))
    e("s_waitcnt lgkmcnt(1)")
    e("v_readfirstlane_b32 s%d, v1" % (sST + 8))
    e("s_cmp_lg_u32 s%d, 0" % (sST + 8)); e("s_cbranch_scc1 L_pok")
    bound(); e("s_branch L_pspin")
    e("L_pok:")
    e("s_waitcnt lgkmcnt(0)")
    for ee in (0, 4, 1, 5, 2, 6, 3, 7):
        e("v_mfma_f32_16x16x32_bf16 %s, %s, %s, 0" % (vr(vV + 4 * ee, 4), vr(vK, 4), vr(vO + 4 * ee, 4)))
    e("s_nop 1")
    for r in range(4):
        e("v_cndmask_b32 v%d, v%d, v%d, s[%d:%d]" % (vK + 4 + r, vV + 4 * r, vV + 16 + 4 * r, sMG, sMG + 1))
        if r < 3: e("s_nop 0")
    pack4(vK + 8, vK + 4)
    e("s_mov_b32 exec_lo, s%d" % (sST + 7)); e("s_mov_b32 exec_hi, 0")
    e("buffer_store_dwordx4 %s, v%d, s[%d:%d], s%d offen sc1" % (vr(vK + 8, 4), vAH2, sWSD, sWSD + 3, sST + 6))
    e("s_mov_b64 exec, -1")
    ret()

    c("==== loader.  items (8 KB): A keys, A values, B keys, B values (static share), then shared (K, V) pairs")
    e("L_loader:")
    sCD, sI, sCNT, sPHS, sLIN0 = 36, 50, 65, 66, 67
    if prio: e("s_setprio %d" % prio)
    e("v_lshrrev_b32 v1, 4, v%d" % vL)
    e("v_lshlrev_b32 v2, 1, v1")
    e("v_xor_b32 v2, v2, v%d" % vL)
    e("v_and_b32 v2, 15, v2")
    e("v_lshlrev_b32 v2, 4, v2")
    e("v_lshl_add_u32 v2, v1, 8, v2")
    e("v_xor_b32 v3, 0x80, v2")
    e("s_lshl_b32 s%d, s%d, 23" % (sBASE, sH))
    e("s_add_u32 s%d, s%d, 0x700000" % (sBASE, sBASE))
    e("s_mov_b32 s%d, 0xfffff" % sMASK)
    e("s_mul_i32 s%d, s%d, %d" % (sLIN0, sH, phaseA * 1024))
    e("s_lshl_b32 s%d, s%d, 13" % (sTMP, sS))
    e("s_add_u32 s%d, s%d, s%d" % (sLIN0, sLIN0, sTMP))
    e("s_mov_b32 s%d, s%d" % (sLIN, sLIN0))
    e("s_mul_i32 s%d, s%d, %d" % (sPH, sH, phaseB * 1024))
    e("s_mov_b32 s%d, 0" % sSLOT); e("s_mov_b32 s%d, 0" % sTI); e("s_mov_b32 s%d, 0" % sPHS)
    e("s_mov_b32 s%d, %d" % (sFREE, NS)); e("s_mov_b32 s%d, %d" % (sCNT, NT_A - D)); e("s_mov_b32 s%d, %d" % (sI, D))
    e("s_lshl_b32 s%d, s%d, 8" % (sTMP, sH)); e("s_add_u32 s%d, s%d, %d" % (sTMP, sTMP, WS_CTR))
    e("s_waitcnt lgkmcnt(0)")
    srd(sCD, 6, "0x8000000")
    e("s_add_u32 s%d, s28, s%d" % (sCTR, sTMP)); e("s_addc_u32 s%d, s29, 0" % (sCTR + 1))
    e("s_load_dword s%d, s[28:29], %d" % (sTAG, WS_NONCE))
    def issue(mid=None):
        e("s_mov_b32 m0, s%d" % sSLOT)
        e("s_add_u32 s%d, s%d, 4096" % (sOFF2, sOFF))
        for i in range(8):
            if i == 4:
                e("s_add_u32 m0, s%d, 4096" % sSLOT)
                e("s_add_u32 s%d, s%d, 8192" % (sSLOT, sSLOT))
                if mid is not None: e("s_waitcnt vmcnt(%d)" % mid)
            e("buffer_load_dwordx4 v%d, s[%d:%d], s%d offen offset:%d %s lds" % (2 + (i & 1), sCD, sCD + 3, sOFF if i < 4 else sOFF2, (i & 3) * 1024, pol))
        e("s_cmp_eq_u32 s%d, %d" % (sSLOT, RING)); e("s_cselect_b32 s%d, 0, s%d" % (sSLOT, sSLOT))
    def req():
        e("s_mov_b32 s%d, 1" % sTK); e("s_atomic_add s%d, s[%d:%d], 0x0 glc" % (sTK, sCTR, sCTR + 1))
    def static_off():
        e("s_and_b32 s%d, s%d, s%d" % (sOFF, sLIN, sMASK))
        if rot:
            e("s_mul_i32 s%d, s%d, %d" % (sTMP2, sTI, rot << 13)); e("s_add_u32 s%d, s%d, s%d" % (sTMP2, sTMP2, sOFF))
            e("s_and_b32 s%d, s%d, 0x1e000" % (sTMP2, sTMP2))
            e("s_and_b32 s%d, s%d, 0xfffe1fff" % (sOFF, sOFF)); e("s_or_b32 s%d, s%d, s%d" % (sOFF, sOFF, sTMP2))
        e("s_add_u32 s%d, s%d, s%d" % (sOFF, sOFF, sBASE))
        e("s_add_u32 s%d, s%d, 1" % (sTI, sTI))
        e("s_add_u32 s%d, s%d, 0x20000" % (sLIN, sLIN))
    for j in range(D):
        if j == P0: e("s_barrier")
        static_off(); issue()
    if P0 >= D: e("s_barrier")
    e("L_ld_loop:")
    jitter(4, 40)
    e("s_sub_u32 s%d, s%d, %d" % (sTMP, sI, D - 1))
    e("v_mov_b32 v4, s%d" % sTMP)
    e("s_waitcnt vmcnt(%d)" % ((D - 1) * 8))
    if stamps == 2:
        l0 = lab("tr0"); l = lab("tr"); l2 = lab("tr2")
        e("s_bitcmp1_b32 s%d, 0" % sI); e("s_cbranch_scc1 %s" % l0)
        e("s_waitcnt lgkmcnt(0)")
        e("s_lshr_b32 s%d, s%d, 1" % (sTMP2, sI)); e("s_sub_u32 s%d, s%d, 1" % (sTMP2, sTMP2)); e("s_and_b32 m0, s%d, 63" % sTMP2)
        e("s_cmp_ge_u32 s%d, 64" % sTMP2); e("s_cbranch_scc1 %s" % l)
        e("v_writelane_b32 v241, s98, m0"); e("s_branch %s" % l2)
        e("%s:" % l); e("v_writelane_b32 v242, s98, m0"); e("%s:" % l2)
        e("s_memrealtime s[98:99]")
        e("%s:" % l0)
    ds1("ds_max_u32 v%d, v4 offset:%d" % (vLB, O_LANDED))
    c("the ring slot of item i - %d must have been consumed" % NS)
    e("s_cmp_lt_u32 s%d, s%d" % (sI, sFREE)); e("s_cbranch_scc1 L_free")
    e("L_fspin:")
    e("ds_read_b96 v[8:10], v%d offset:%d" % (vLB, O_NEXT))
    e("s_waitcnt lgkmcnt(0)")
    e("v_min3_u32 v8, v8, v9, v10")
    e("s_nop 0")
    e("v_readfirstlane_b32 s%d, v8" % sFREE)
    e("s_add_u32 s%d, s%d, %d" % (sFREE, sFREE, NS))
    e("s_cmp_lt_u32 s%d, s%d" % (sI, sFREE)); e("s_cbranch_scc1 L_free")
    e("v_mov_b32 v5, s%d" % sI)
    e("s_waitcnt vmcnt(0)")
    ds1("ds_max_u32 v%d, v5 offset:%d" % (vLB, O_LANDED))
    bound(); slp(1); e("s_branch L_fspin")
    e("L_free:")
    e("s_cmp_eq_u32 s%d, 0" % sCNT); e("s_cbranch_scc1 L_pass")
    e("L_static:")
    e("s_sub_u32 s%d, s%d, 1" % (sCNT, sCNT))
    if dyn:
        e("s_cmp_lg_u32 s%d, %d" % (sI, JD - 2)); e("s_cbranch_scc1 L_noreq")
        req()
        e("L_noreq:")
    static_off()
    e("L_go:")
    issue(WH)
    e("s_add_u32 s%d, s%d, 1" % (sI, sI))
    e("s_branch L_ld_loop")
    e("L_pass:")
    e("s_cmp_ge_u32 s%d, %d" % (sI, JD)); e("s_cbranch_scc1 L_shared")
    e("s_mov_b32 s%d, 0" % sTI)
    e("s_cmp_eq_u32 s%d, %d" % (sI, JB)); e("s_cbranch_scc1 L_passB")
    e("s_cmp_eq_u32 s%d, %d" % (sI, NT_A))
    e("s_cselect_b32 s%d, s8, s18" % sCD); e("s_cselect_b32 s%d, s9, s19" % (sCD + 1)); e("s_cselect_b32 s%d, %d, %d" % (sCNT, NT_A, nstatB))
    e("s_mov_b32 s%d, s%d" % (sLIN, sLIN0))
    e("s_branch L_static")
    e("L_passB:")
    e("s_mov_b32 s%d, s16" % sCD); e("s_mov_b32 s%d, s17" % (sCD + 1)); e("s_mov_b32 s%d, %d" % (sCNT, nstatB))
    e("s_lshl_b32 s%d, s%d, 23" % (sBASE, sH))
    e("s_mov_b32 s%d, 0x7fffff" % sMASK)
    e("s_lshl_b32 s%d, s%d, 13" % (sTMP, sS))
    e("s_add_u32 s%d, s%d, s%d" % (sLIN0, sPH, sTMP))
    e("s_mov_b32 s%d, s%d" % (sLIN, sLIN0))
    e("s_branch L_static")
    e("L_shared:")
    if dyn:
        c("last tiles of the head: taken from the head group's shared counter")
        e("s_bitcmp1_b32 s%d, 0" % sI)
        e("s_cselect_b32 s%d, s18, s16" % sCD); e("s_cselect_b32 s%d, s19, s17" % (sCD + 1))
        e("s_cbranch_scc1 L_go")
        e("s_waitcnt lgkmcnt(0)")
        e("s_cmp_ge_u32 s%d, %d" % (sTK, NDYN)); e("s_cbranch_scc1 L_ld_drain")
        e("s_lshl_b32 s%d, s%d, 13" % (sOFF, sTK))
        req()
        e("s_add_u32 s%d, s%d, 1" % (sTI, sTI))
        e("s_add_u32 s%d, s%d, s%d" % (sOFF, sOFF, sPH))
        e("s_add_u32 s%d, s%d, %d" % (sOFF, sOFF, nstatB * 0x20000))
        e("s_and_b32 s%d, s%d, s%d" % (sOFF, sOFF, sMASK))
        e("s_add_u32 s%d, s%d, s%d" % (sOFF, sOFF, sBASE))
        e("s_branch L_go")
    e("L_ld_drain:")
    e("v_mov_b32 v5, s%d" % sTI)
    e("ds_write_b32 v%d, v5 offset:%d" % (vLB, O_TOTAL))
    for k in range(D - 2, -1, -1):
        e("s_sub_u32 s%d, s%d, %d" % (sTMP2, sI, k))
        e("v_mov_b32 v4, s%d" % sTMP2)
        e("s_waitcnt vmcnt(%d)" % (k * 8))
        ds1("ds_max_u32 v%d, v4 offset:%d" % (vLB, O_LANDED))
    if stamps: e("v_writelane_b32 v%d, s%d, 14" % (NV, sTI)); e("v_writelane_b32 v%d, 0, 15" % NV)
    stamp(1)
    if prio: e("s_setprio 0")
    c("final reduction roles: workgroups 0..35 branch B, 64..99 branch A")
    e("s_mov_b32 s%d, 1" % sB); e("s_mov_b32 s%d, s2" % sRJ)
    e("s_cmp_lt_u32 s2, %d" % NRED); e("s_cbranch_scc1 L_reduce")
    e("s_mov_b32 s%d, 0" % sB); e("s_sub_u32 s%d, s2, %d" % (sRJ, REDA))
    e("s_cmp_lt_u32 s%d, %d" % (sRJ, NRED)); e("s_cbranch_scc1 L_reduce")
    e("L_ld_done:")
    if diagspin:
        e("L_dspin:"); e("s_memrealtime s[100:101]"); e("s_waitcnt lgkmcnt(0)"); e("s_sub_u32 s100, s100, s98")
        e("s_cmp_lt_u32 s100, %d" % diagspin); e("s_cbranch_scc1 L_dspin")
    stamp(2); stamp_flush()
    if stamps == 2:
        e("s_add_u32 s44, s28, 0x11000000"); e("s_addc_u32 s45, s29, 0")
        e("s_lshl_b32 s46, s2, 9"); e("v_lshl_add_u32 v1, v%d, 2, s46" % vL)
        e("global_store_dword v1, v241, s[44:45]"); e("global_store_dword v1, v242, s[44:45] offset:256")
    e("L_end:")
    e("s_endpgm")
    if jit:
        e("L_bail:")
        e("s_lshl_b32 s100, s100, 16"); e("s_lshl_b32 s101, s%d, 8" % sW); e("s_or_b32 s100, s100, s101"); e("s_or_b32 s100, s100, s2")
        e("s_lshl_b32 s101, s%d, 2" % sW)
        e("v_mov_b32 v1, s101"); e("v_mov_b32 v2, s100")
        e("global_store_dword v1, v2, s[26:27]")
        e("s_endpgm")
    c("---- sum 128 partial rows for 16 output columns")
    a = vK
    e("L_reduce:")
    jitter(1, 40)
    srd(sWSD, 28, WS_SIZE); srd(sOUTD, 24, 2304)
    e("v_lshrrev_b32 v1, 2, v%d" % vL); e("v_mul_u32_u24 v1, 1152, v1"); e("v_and_b32 v2, 3, v%d" % vL); e("v_lshl_add_u32 v1, v2, 4, v1")
    e("s_cmp_ge_u32 s%d, 18" % sRJ); e("s_cselect_b32 s%d, %d, 0" % (sST + 8, 128 * 1152 - 18 * 64))
    e("s_lshl_b32 s%d, s%d, 6" % (sST + 9, sRJ)); e("s_add_u32 s%d, s%d, s%d" % (sST + 8, sST + 8, sST + 9))
    e("s_mul_i32 s%d, s%d, %d" % (sST + 9, sB, 256 * 1152)); e("s_add_u32 s%d, s%d, s%d" % (sST + 8, sST + 8, sST + 9))
    e("s_add_u32 s%d, s%d, %d" % (sST + 8, sST + 8, WS_H2))
    e("s_mul_i32 s%d, s%d, 1152" % (sST + 6, sB)); e("s_lshl_b32 s%d, s%d, 5" % (sST + 7, sRJ)); e("s_add_u32 s%d, s%d, s%d" % (sST + 6, sST + 6, sST + 7))
    c("column = c4*4 + e(row): the lane rows end up holding e = 0,2,1,3")
    e("v_lshrrev_b32 v5, 5, v%d" % vL); e("v_bfe_u32 v4, v%d, 4, 1" % vL)
    e("v_lshl_add_u32 v5, v4, 1, v5"); e("v_lshl_add_u32 v5, v2, 2, v5"); e("v_lshlrev_b32 v5, 1, v5")
    lds_wait(vLB, O_OPR + 4, 1, 1, tmp=sST + 9, dst=6)
    e("s_add_u32 s%d, s%d, %#x" % (sTAG, sTAG, TAGINC))
    x0, y0 = a + 8, a + 40
    nset = 2 if pipe2 else 1
    def r1issue(x):
        e("s_mov_b32 s%d, s%d" % (sST + 9, sST + 8))
        for i in range(8):
            e("buffer_load_dwordx4 %s, v1, s[%d:%d], s%d offen sc1" % (vr(x + 4 * i, 4), sWSD, sWSD + 3, sST + 9))
            if i < 7: e("s_add_u32 s%d, s%d, %d" % (sST + 9, sST + 9, 16 * 1152))
    def r1check(x):
        for i in range(8):
            r = x + 4 * i
            e("s_waitcnt vmcnt(%d)" % (8 * nset - 1 - i))
            if i == 0: e("v_xor_b32 v3, s%d, v%d" % (sTAG, r + 3))
            else: e("v_bitop3_b32 v3, v3, v%d, s%d bitop3:0xf6" % (r + 3, sTAG))
            e("v_lshlrev_b32 v%d, 8, v%d" % (r + 3, r + 2))
            e("v_alignbit_b32 v%d, v%d, v%d, 16" % (r + 2, r + 1, r + 2))
            e("v_alignbit_b32 v%d, v%d, v%d, 8" % (r + 1, r, r + 1))
            if i:
                e("v_pk_add_f32 %s, %s, %s" % (vr(x + 2, 2), vr(x + 2, 2), vr(r + 2, 2)))
                e("v_pk_add_f32 %s, %s, %s" % (vr(x, 2), vr(x, 2), vr(r, 2)))
        e("v_cmp_ne_u32 vcc, 0, v3")
    def r1head(x):
        e("s_nop 0")
        for i in range(4): e("v_add_f32_dpp v%d, v%d, v%d row_ror:4 row_mask:0xf bank_mask:0xf" % (a + i, x + i, x + i))
    if pipe2:
        r1issue(x0)
        e("s_mov_b64 vcc, -1")
        slp(pd2)
        e("s_branch L_r1okx")
        e("L_r1spin:")
        r1issue(y0); r1check(x0)
        e("s_cbranch_vccz L_r1okx")
        r1issue(x0); r1check(y0)
        e("s_cbranch_vccz L_r1oky")
        bound(); e("s_branch L_r1spin")
        e("L_r1oky:")
        r1head(y0); e("s_branch L_r1tail")
    else:
        e("s_mov_b64 vcc, -1")
        e("s_branch L_r1okx")
        e("L_r1spin:")
        r1issue(x0); r1check(x0)
        e("s_cbranch_vccz L_r1okx")
        bound(); slp(gsleep); e("s_branch L_r1spin")
    e("L_r1okx:")
    r1head(x0)
    e("L_r1tail:")
    for i in range(4): e("v_add_f32_dpp v%d, v%d, v%d row_ror:8 row_mask:0xf bank_mask:0xf" % (a + i, a + i, a + i))
    e("s_nop 0")
    e("v_permlane32_swap_b32 v%d, v%d" % (a, a + 1)); e("v_permlane32_swap_b32 v%d, v%d" % (a + 2, a + 3))
    e("v_add_f32 v%d, v%d, v%d" % (a, a, a + 1)); e("v_add_f32 v%d, v%d, v%d" % (a + 2, a + 2, a + 3))
    e("s_nop 1")
    e("v_permlane16_swap_b32 v%d, v%d" % (a, a + 2))
    e("v_add_f32 v%d, v%d, v%d" % (a, a, a + 2))
    e("v_cvt_pk_bf16_f32 v%d, v%d, v%d" % (a, a, a))
    e("s_cbranch_vccnz L_r1spin")
    e("s_mov_b32 exec_lo, 0x000f000f"); e("s_mov_b32 exec_hi, 0x000f000f")
    e("buffer_store_short v%d, v5, s[%d:%d], s%d offen sc1" % (a, sOUTD, sOUTD + 3, sST + 6))
    e("s_mov_b64 exec, -1")
    c("every workgroup has read the tag word by now: advance it for the next launch")
    e("s_cmp_lg_u32 s2, 0"); e("s_cbranch_scc1 L_ld_done")
    e("v_mov_b32 v1, s%d" % sTAG); e("v_mov_b32 v2, %d" % WS_NONCE)
    e("s_mov_b64 exec, 1"); e("buffer_store_dword v1, v2, s[%d:%d], 0 offen sc1" % (sWSD, sWSD + 3)); e("s_mov_b64 exec, -1")
    e("s_branch L_ld_done")

    c("==== service wave")
    e("L_service:")
    rW = 24
    vAH1 = 8
    e("v_mov_b32 v2, 0"); e("v_mov_b32 v3, -1"); e("v_mov_b32 v4, 0"); e("v_mov_b32 v5, 1"); e("v_mov_b32 v6, 2")
    for i in range(4): e("v_mov_b32 v%d, 0" % (12 + i))
    e("ds_write_b64 v%d, v[2:3] offset:%d" % (vLB, O_LANDED))
    e("ds_write_b96 v%d, v[4:6] offset:%d" % (vLB, O_NEXT))
    e("ds_write_b128 v%d, v[12:15] offset:32" % vLB)
    e("ds_write_b128 v%d, v[12:15] offset:48" % vLB)
    e("v_lshlrev_b32 v7, 4, v%d" % vL)
    for i in range(4): e("v_mov_b32 v%d, -1" % (16 + i))
    e("s_lshl_b32 s%d, s2, 10" % (sST + 5)); e("s_add_u32 s%d, s%d, %d" % (sST + 5, sST + 5, WS_H1)); e("s_add_u32 s%d, s%d, %d" % (sST + 6, sST + 5, 256 * 1024))
    e("s_waitcnt lgkmcnt(0)")
    e("s_load_dword s%d, s[28:29], %d" % (sTAG, WS_NONCE))
    srd(sWSD, 28, WS_SIZE)
    if dyn:
        e("s_cmp_lg_u32 s%d, 0" % sS); e("s_cbranch_scc1 L_noz")
        e("s_lshl_b32 s%d, s%d, 8" % (sST + 7, sH)); e("s_add_u32 s%d, s%d, %d" % (sST + 7, sST + 7, WS_CTR))
        e("s_mov_b64 exec, 1"); e("buffer_store_dword v2, v2, s[%d:%d], s%d offen sc1" % (sWSD, sWSD + 3, sST + 7)); e("s_mov_b64 exec, -1")
        e("L_noz:")
    if not clr0: e("s_barrier")
    c("mark this workgroup's two split records empty (all-ones words never occur in a published record)")
    for so in (sST + 5, sST + 6):
        e("buffer_store_dwordx4 v[16:19], v7, s[%d:%d], s%d offen sc1" % (sWSD, sWSD + 3, so))
    if clr0: e("s_barrier")
    e("s_mov_b32 s%d, %#x" % (sLOG2E, LOG2E))
    packsel()
    e("v_and_b32 v5, 15, v%d" % vL); e("v_lshrrev_b32 v6, 4, v%d" % vL)
    e("v_lshlrev_b32 v5, 10, v5"); e("v_lshl_add_u32 v%d, v6, 5, v5" % vAH1)
    e("v_mul_u32_u24 v10, %d, v6" % (6 * 256)); e("v_and_b32 v11, 15, v%d" % vL); e("v_lshl_add_u32 v10, v11, 4, v10"); e("v_add_u32 v10, v10, v%d" % vLB)
    c("q piece (16 B) = four partial sums (top 24 bits each) + tag; 256 B per workgroup")
    e("s_lshl_b32 s%d, s%d, 12" % (sST + 10, sH))
    e("s_lshl_b32 s%d, s%d, 8" % (sST + 9, sS))
    e("s_add_u32 s%d, s%d, s%d" % (sST + 9, sST + 10, sST + 9))
    jitter(1, 60)
    lds_wait(vLB, O_CNTQ, 3, csleep)
    for r in range(6): e("ds_read_b128 %s, v10 offset:%d" % (vr(rW + 4 * r, 4), O_SCR + r * 256))
    e("s_add_u32 s%d, s%d, %#x" % (sTAG, sTAG, TAGINC))
    e("v_mov_b32 v%d, s%d" % (rW + 27, sTAG))
    e("s_waitcnt lgkmcnt(0)")
    for dst, src in ((0, 3), (1, 4), (2, 5), (0, 1), (0, 2)):
        for hh in range(2): e("v_pk_add_f32 %s, %s, %s" % (vr(rW + 4 * dst + 2 * hh, 2), vr(rW + 4 * dst + 2 * hh, 2), vr(rW + 4 * src + 2 * hh, 2)))
    for sw in ("16", "32"):
        for d in range(4): e("v_mov_b32 v%d, v%d" % (rW + 4 + d, rW + d))
        for d in range(4): e("v_permlane%s_swap_b32 v%d, v%d" % (sw, rW + d, rW + 4 + d))
        for hh in range(2): e("v_pk_add_f32 %s, %s, %s" % (vr(rW + 2 * hh, 2), vr(rW + 2 * hh, 2), vr(rW + 4 + 2 * hh, 2)))
    for d in range(4): e("v_add_u32 v%d, 0x80, v%d" % (rW + d, rW + d))
    pack4(rW + 24, rW)
    e("s_waitcnt vmcnt(0)")
    e("s_mov_b64 exec, 0xffff")
    e("buffer_store_dwordx4 %s, v7, s[%d:%d], s%d offen sc1" % (vr(rW + 24, 4), sWSD, sWSD + 3, sST + 9))
    e("s_mov_b64 exec, -1")
    stamp(1)
    rR = rW + 32
    def qgather(b):
        e("L_qspin%d:" % b)
        for j in range(2):
            e("buffer_load_dwordx4 %s, v7, s[%d:%d], s%d offen offset:%d sc1" % (vr(rR + 4 * j, 4), sWSD, sWSD + 3, sST + 10, (2 * j + b) * 1024))
        for j in range(2):
            r = rR + 4 * j
            e("s_waitcnt vmcnt(%d)" % (1 - j))
            if j == 0: e("v_xor_b32 v4, s%d, v%d" % (sTAG, r + 3))
            else: e("v_bitop3_b32 v4, v4, v%d, s%d bitop3:0xf6" % (r + 3, sTAG))
            e("v_lshlrev_b32 v%d, 8, v%d" % (r + 3, r + 2))
            e("v_alignbit_b32 v%d, v%d, v%d, 16" % (r + 2, r + 1, r + 2))
            e("v_alignbit_b32 v%d, v%d, v%d, 8" % (r + 1, r, r + 1))
            for d in range(3): e("v_and_b32 v%d, 0xffffff00, v%d" % (r + d, r + d))
        e("v_cmp_ne_u32 vcc, 0, v4")
        e("v_pk_add_f32 %s, %s, %s" % (vr(rR, 2), vr(rR, 2), vr(rR + 4, 2)))
        e("v_pk_add_f32 %s, %s, %s" % (vr(rR + 2, 2), vr(rR + 2, 2), vr(rR + 6, 2)))
        e("s_cbranch_vccz L_qready%d" % b)
        bound(); slp(gsleep); e("s_branch L_qspin%d" % b)
        e("L_qready%d:" % b)
        e("v_cvt_pk_bf16_f32 v%d, v%d, v%d" % (rR, rR, rR + 1)); e("v_cvt_pk_bf16_f32 v%d, v%d, v%d" % (rR + 1, rR + 2, rR + 3))
        e("v_lshl_add_u32 v4, v%d, 3, v%d" % (vL, vLB))
        e("v_mov_b32 v1, %d" % (b + 1))
        e("ds_write_b64 v4, %s offset:%d" % (vr(rR, 2), O_QB + b * 512))
        e("ds_write_b32 v%d, v1 offset:%d" % (vLB, O_QRDY))
    qgather(0)
    stamp(2)
    slp(bdelay)
    qgather(1)
    e("s_mov_b32 s%d, 0" % sB)
    e("L_svc_branch:")
    jitter(1, 40)
    e("s_lshl_b32 s%d, s%d, 2" % (sST + 2, sB)); e("v_add_u32 v3, s%d, v%d" % (sST + 2, vLB))
    e("s_lshl_b32 s%d, s%d, 6" % (sST + 2, sB)); e("v_and_b32 v13, 48, v%d" % vL); e("v_add3_u32 v13, v13, s%d, v%d" % (sST + 2, vLB))
    e("s_lshl_b32 s%d, s%d, 4" % (sST + 4, sB)); e("s_add_u32 s%d, s%d, s%d" % (sST + 4, sST + 4, sH))
    e("s_lshl_b32 s%d, s%d, 14" % (sST + 4, sST + 4)); e("s_add_u32 s%d, s%d, %d" % (sST + 4, sST + 4, WS_H1))
    e("s_and_b32 s%d, s%d, 7" % (sST + 6, sS)); e("s_lshl_b32 s%d, s%d, 7" % (sST + 6, sST + 6))
    e("s_add_u32 s%d, s%d, s%d" % (sST + 4, sST + 4, sST + 6))
    e("s_cmp_lg_u32 s%d, 0" % sB); e("s_cbranch_scc1 L_svc_b")
    if adefer > 0: lds_wait(vLB, O_LANDED, adefer, 16)
    elif adefer < 0: lds_wait(vLB, O_TOTAL, 0, 4, cmp="ge_i32")
    e("L_svc_b:")
    lds_wait(3, O_PUB, 1, ssleep)
    if stamps:
        l = lab("s"); e("s_cmp_eq_u32 s%d, 0" % sB); e("s_cbranch_scc1 %s" % l); stamp(4); e("%s:" % l)
    slp(h1delay)
    a = rW + 24
    x = a + 16
    c("combine the 16 splits for this workgroup's 32 dims")
    e("L_h1spin:")
    e("buffer_load_dwordx4 %s, v%d, s[%d:%d], s%d offen sc1" % (vr(x, 4), vAH1, sWSD, sWSD + 3, sST + 4))
    e("buffer_load_dwordx4 %s, v%d, s[%d:%d], s%d offen offset:16 sc1" % (vr(x + 4, 4), vAH1, sWSD, sWSD + 3, sST + 4))
    e("s_waitcnt vmcnt(1)")
    e("v_max_f32_dpp v14, v%d, v%d row_ror:8 row_mask:0xf bank_mask:0xf" % (x + 3, x + 3))
    e("v_max3_u32 v15, v%d, v%d, v%d" % (x, x + 1, x + 2))
    e("v_alignbit_b32 v%d, v%d, v%d, 8" % (a + 1, x, x + 1))
    e("v_max_f32_dpp v14, v14, v14 row_ror:4 row_mask:0xf bank_mask:0xf")
    e("v_alignbit_b32 v%d, v%d, v%d, 16" % (a + 2, x + 1, x + 2))
    e("v_lshlrev_b32 v%d, 8, v%d" % (a + 3, x + 2))
    e("v_max_f32_dpp v14, v14, v14 row_ror:2 row_mask:0xf bank_mask:0xf")
    e("s_waitcnt vmcnt(0)")
    e("v_max3_u32 v15, v15, v%d, v%d" % (x + 3, x + 4))
    e("v_max_f32_dpp v14, v14, v14 row_ror:1 row_mask:0xf bank_mask:0xf")
    e("v_max3_u32 v15, v15, v%d, v%d" % (x + 5, x + 6))
    e("v_sub_f32 v14, v%d, v14" % (x + 3))
    e("v_max_u32 v15, v15, v%d" % (x + 7))
    e("v_exp_f32 v14, v14")
    e("v_cmp_eq_u32 vcc, -1, v15")
    e("v_alignbit_b32 v%d, v%d, v%d, 8" % (a + 5, x + 4, x + 5))
    e("v_alignbit_b32 v%d, v%d, v%d, 16" % (a + 6, x + 5, x + 6))
    e("v_lshlrev_b32 v%d, 8, v%d" % (a + 7, x + 6))
    e("s_cbranch_vccz L_h1ok")
    bound(); slp(gsleep); e("s_branch L_h1spin")
    e("L_h1ok:")
    for i in range(8): e("v_mul_f32 v%d, v%d, v14" % (a + i, (x + i if i % 4 == 0 else a + i)))
    for r in (8, 4, 2, 1):
        e("v_add_f32_dpp v14, v14, v14 row_ror:%d row_mask:0xf bank_mask:0xf" % r)
        for i in range(8): e("v_add_f32_dpp v%d, v%d, v%d row_ror:%d row_mask:0xf bank_mask:0xf" % (a + i, a + i, a + i, r))
    e("v_rcp_f32 v14, v14"); e("s_nop 0")
    for i in range(8): e("v_mul_f32 v%d, v%d, v14" % (a + i, a + i))
    for p in range(4): e("v_cvt_pk_bf16_f32 v%d, v%d, v%d" % (a + 12 + p, a + 2 * p, a + 2 * p + 1))
    e("s_mov_b32 exec_lo, 0x00010001"); e("s_mov_b32 exec_hi, 0x00010001")
    e("ds_write_b128 v13, %s offset:%d" % (vr(a + 12, 4), O_OP))
    e("ds_write_b32 v3, v1 offset:%d" % O_OPR)
    e("s_mov_b64 exec, -1")
    e("s_add_u32 s%d, s%d, 1" % (sB, sB))
    if stamps:
        l = lab("s"); e("s_cmp_eq_u32 s%d, 2" % sB); e("s_cbranch_scc1 %s" % l); stamp(3); e("%s:" % l)
    e("s_cmp_lt_u32 s%d, 2" % sB); e("s_cbranch_scc1 L_svc_branch")
    stamp(5); stamp_flush()
    e("s_endpgm")

    nv = NV + (8 if stamps else 0)
    e('.section .rodata,"a"\n.p2align 6\n.amdhsa_kernel %s_kernel' % KN)
    e("  .amdhsa_next_free_vgpr %d\n  .amdhsa_next_free_sgpr 102\n  .amdhsa_accum_offset %d" % (nv, nv))
    e("  .amdhsa_group_segment_fixed_size 0\n  .amdhsa_kernarg_size 104\n  .amdhsa_user_sgpr_count 2\n  .amdhsa_user_sgpr_kernarg_segment_ptr 1\n  .amdhsa_system_sgpr_workgroup_id_x 1\n  .amdhsa_float_denorm_mode_32 3\n.end_amdhsa_kernel")
    L = [(x[:-3] + (ldpol if "load" in x else stpol)) if x.endswith(" sc1") and x.startswith("buffer_") else x for x in L]
    return "\n".join(("    " + x if x and not x.endswith(":") and not x.startswith((";", ".", " ")) else x) for x in L) + "\n"

if __name__ == "__main__":
    out = sys.argv[1]
    kw = {}
    for a in sys.argv[2:]:
        k, v = a.split("=")
        kw[k] = v.replace("+", " ") if k.endswith("pol") or k == "WL" else int(v)
    t = gen(**kw)
    open(out, "w").write(t)
    for p in hazard.check(t): print("HAZARD", p)
```
